```python
import torch

def _softmax(x, axis=-1):
    return torch.softmax(x, dim=axis)
def _gelu(x):
    return torch.nn.functional.gelu(x, approximate="tanh")
def _silu(x):
    return torch.nn.functional.silu(x)
def _sigmoid(x):
    return torch.sigmoid(x)
def _layernorm(x, axis=-1, eps=1e-5):
    m = x.mean(dim=axis, keepdim=True)
    v = x.var(dim=axis, keepdim=True, unbiased=False)
    return (x - m) / torch.sqrt(v + eps)
def _scatter_add(tgt, idx, src, axis=0):
    return tgt.clone().index_add_(axis, idx, src)
def _segment_sum(src, seg, n):
    out = torch.zeros((n,) + src.shape[1:], dtype=src.dtype)
    return out.index_add_(0, seg, src)
def _pad(x, pw):
    flat = tuple(v for pair in reversed(pw) for v in pair)
    return torch.nn.functional.pad(x, flat)

kernel_name = 'concat_heads__mha_block__grouped_kv_mqa__prompt'

def setup_inputs():

    _w = (lambda a: (lambda t: t.to(torch.bfloat16) if t.is_floating_point() else t)(torch.as_tensor(a)))
    def _A_setup():
        B, S, D, H = 1, 2048, 640, 32
        return {
            "x": _w((lambda *s: torch.randn(*s, dtype=torch.bfloat16) * 0.2)(B, S, D)),
            "wqkv": _w((lambda *s: torch.randn(*s, dtype=torch.bfloat16) * 0.2)(D, 3 * D)),
            "wo": _w((lambda *s: torch.randn(*s, dtype=torch.bfloat16) * 0.05)(D, D)),
        }
    _A_in = _A_setup()

    def _B_setup():
        B, S, D, H = 1, 2048, 640, 32
        Dh = D // H
        return {
            "x": _w((lambda *s: torch.randn(*s, dtype=torch.bfloat16) * 0.05)(B, S, D)),
            "wq": _w((lambda *s: torch.randn(*s, dtype=torch.bfloat16) * 0.8)(D, H * Dh)),
            "wk": _w((lambda *s: torch.randn(*s, dtype=torch.bfloat16) * 0.8)(D, Dh)),
            "wv": _w((lambda *s: torch.randn(*s, dtype=torch.bfloat16) * 0.1)(D, Dh)),
            "wo": _w((lambda *s: torch.randn(*s, dtype=torch.bfloat16) * 0.1)(H * Dh, D)),
        }
    _B_in = _B_setup()

    return {
        "A_x": _A_in["x"],
        "A_wqkv": _A_in["wqkv"],
        "A_wo": _A_in["wo"],
        "B_x": _B_in["x"],
        "B_wq": _B_in["wq"],
        "B_wk": _B_in["wk"],
        "B_wv": _B_in["wv"],
        "B_wo": _B_in["wo"],
    }

def reference(A_x, A_wqkv, A_wo, B_x, B_wq, B_wk, B_wv, B_wo):
    def _A_ref(x, wqkv, wo):
        B, S, D = x.shape
        H = 32
        Dh = D // H
        qkv = (lambda x, *d: x.permute(*d))((x @ wqkv).reshape(B, S, 3, H, Dh), 2, 0, 3, 1, 4)
        q, k, v = qkv[0], qkv[1], qkv[2]
        scores = torch.einsum("bhqd,bhkd->bhqk", q, k) * (Dh ** -0.5)
        p = _softmax(scores, axis=-1)
        o = torch.einsum("bhqk,bhkd->bhqd", p, v)
        return (lambda x, *d: x.permute(*d))(o, 0, 2, 1, 3).reshape(B, S, D) @ wo

    def _B_ref(x, wq, wk, wv, wo):
        B, S, D = x.shape
        H = 32
        Dh = D // H
        q = (lambda x, *d: x.permute(*d))((x @ wq).reshape(B, S, H, Dh), 0, 2, 1, 3)
        k = x @ wk
        v = x @ wv
        scores = torch.einsum("bhqd,bkd->bhqk", q, k) * (Dh ** -0.5)
        p = _softmax(scores, axis=-1)
        o = torch.einsum("bhqk,bkd->bhqd", p, v)
        return (lambda x, *d: x.permute(*d))(o, 0, 2, 1, 3).reshape(B, S, H * Dh) @ wo

    a = _A_ref(A_x, A_wqkv, A_wo)
    b = _B_ref(B_x, B_wq, B_wk, B_wv, B_wo)
    return torch.concatenate([a, b], axis=-1)
```

```python
WS_KV = 0
KV_HEAD = 163840
WS_Q = 0x600000
WS_O = 0xC00000
WS_DBG = 0x1400000
TILE = 2560

def R(b, n): return f"v[{b}:{b+n-1}]"

def attn_kernel(name="attn_kernel", U=4, stamp=False, opts=None):
    opts = opts or {}
    L = []
    e = L.append
    aK16, aK8, aV = 1, 2, 3
    Q16 = {'a': 8, 'b': 16}
    Q8 = {'a': 12, 'b': 14}
    K16 = [20, 36]; V0 = [24, 40]; V1 = [28, 44]; K8 = [32, 34]
    P = {'a': 48, 'b': 56}
    S = {'a': 64, 'b': 80}
    O = {'a': 96, 'b': 112}
    M = {'a': 128, 'b': 129}
    T = 130
    e(f".globl {name}\n.p2align 8\n.type {name},@function\n{name}:")
    e("s_cmp_ge_u32 s2, 256")
    e(f"s_cbranch_scc1 {name}_end")
    e("s_load_dwordx2 s[4:5], s[0:1], 80")
    if stamp:
        e("s_memtime s[40:41]")
        e("s_memrealtime s[42:43]")
    e("s_and_b32 s6, s2, 7")
    e("s_lshr_b32 s7, s2, 3")
    e("s_lshr_b32 s8, s7, 4")
    e("s_lshr_b32 s9, s7, 2")
    e("s_and_b32 s9, s9, 3")
    e("s_lshl_b32 s6, s6, 2")
    e("s_add_u32 s9, s9, s6")
    e("s_and_b32 s10, s7, 3")
    e("v_lshrrev_b32 v4, 6, v0")
    e("v_and_b32 v5, 63, v0")
    e("v_readfirstlane_b32 s11, v4")
    e("s_cmp_eq_u32 s8, 0")
    e("s_cselect_b32 s12, s9, 32")
    e(f"s_mul_i32 s12, s12, {KV_HEAD}")
    e("s_lshl_b32 s13, s8, 5")
    e("s_add_u32 s13, s13, s9")
    e("s_lshl_b32 s13, s13, 6")
    e("s_lshl_b32 s14, s10, 4")
    e("s_add_u32 s13, s13, s14")
    e("s_lshl_b32 s14, s11, 1")
    e("s_add_u32 s13, s13, s14")
    e("s_mul_i32 s13, s13, 1280")
    e(f"s_add_u32 s13, s13, {WS_Q}")
    e("v_lshlrev_b32 v6, 4, v5")
    e("v_lshlrev_b32 v7, 3, v5")
    e("s_lshl_b32 s15, s11, 10")
    e("v_add_u32 v4, s15, v6")
    e("s_waitcnt lgkmcnt(0)")
    e("s_mov_b32 s16, s4")
    e("s_and_b32 s17, s5, 0xffff")
    e("s_mov_b32 s18, 0x10000000")
    e("s_mov_b32 s19, 0x00020000")
    e(f"buffer_load_dwordx4 {R(Q16['a'],4)}, v6, s[16:19], s13 offen")
    e(f"buffer_load_dwordx2 {R(Q8['a'],2)}, v7, s[16:19], s13 offen offset:1024")
    e(f"buffer_load_dwordx4 {R(Q16['b'],4)}, v6, s[16:19], s13 offen offset:1280")
    e(f"buffer_load_dwordx2 {R(Q8['b'],2)}, v7, s[16:19], s13 offen offset:2304")
    e("s_mov_b32 s20, s12")
    e("s_mov_b32 s21, s15")
    for i in range(20):
        e("s_mov_b32 m0, s21")
        e("s_add_u32 s21, s21, 8192")
        e("buffer_load_dwordx4 v4, s[16:19], s20 offen lds")
        e("s_add_u32 s20, s20, 8192")
    e("s_mov_b32 s22, 0x000fffff")
    e("s_mov_b32 s23, 0x000fffff")
    e("s_mov_b32 s24, -1")
    e("s_mov_b32 s25, 0")
    e("s_mov_b32 s26, 0")
    e("s_mov_b32 s27, -1")
    e("s_mov_b32 s28, 0x11000000")
    e("s_mov_b32 s29, 0x11000000")
    e(f"v_mov_b32 v{T}, 0x3f803f80")
    e(f"v_cndmask_b32 v{T+1}, 0, v{T}, s[28:29]")
    for s in range(2):
        for r in range(4):
            e(f"v_mov_b32 v{V0[s]+r}, v{T+1}")
            e(f"v_mov_b32 v{V1[s]+r}, v{T+1}")
        e(f"v_mov_b32 v{K8[s]}, 0x3f803f80")
        e(f"v_mov_b32 v{K8[s]+1}, 0x00003f80")
    e("v_and_b32 v6, 31, v5")
    e("v_lshrrev_b32 v7, 5, v5")
    e("s_movk_i32 s30, 1280")
    e(f"v_mul_lo_u32 v{T+8}, v6, s30")
    e(f"v_lshl_add_u32 v{T+8}, v7, 4, v{T+8}")
    e("s_lshl_b32 s31, s10, 9")
    e("s_lshl_b32 s32, s11, 6")
    e("s_add_u32 s31, s31, s32")
    e("s_mul_i32 s31, s31, 1280")
    e("s_mul_i32 s32, s8, 2621440")
    e("s_add_u32 s31, s31, s32")
    e("s_mul_i32 s32, s9, 40")
    e("s_add_u32 s31, s31, s32")
    e(f"s_add_u32 s31, s31, {WS_O}")
    e(f"v_lshlrev_b32 v{T+5}, 4, v5")
    e(f"v_lshlrev_b32 v{T+6}, 3, v6")
    e("s_movk_i32 s30, 320")
    e(f"v_mul_lo_u32 v{T+7}, v7, s30")
    e(f"v_lshl_add_u32 v{T+7}, v6, 4, v{T+7}")
    e("s_mov_b32 s33, 1")
    e("s_mov_b32 s34, 2")
    if opts.get('prio'):
        e("s_cmp_ge_u32 s11, 4")
        e(f"s_cbranch_scc0 {name}_noprio")
        e("s_setprio 1")
        e(f"{name}_noprio:")
    e("s_waitcnt vmcnt(17)")
    e("s_barrier")
    if stamp: e("s_memtime s[48:49]")
    e(f"{name}_restart:")
    e(f"v_mov_b32 v{aK16}, v{T+5}")
    e(f"v_mov_b32 v{aK8}, v{T+6}")
    e(f"v_mov_b32 v{aV}, v{T+7}")
    e(f"ds_read_b128 {R(K16[0],4)}, v{aK16} offset:{TILE}")
    e("s_mov_b64 exec, s[24:25]")
    e(f"ds_read_b64 {R(K8[0],2)}, v{aK8} offset:{TILE+1024}")
    e("s_mov_b64 exec, s[22:23]")
    e(f"ds_read_b128 {R(V0[0],4)}, v{aV} offset:1280")
    e(f"ds_read_b128 {R(V1[0],4)}, v{aV} offset:1920")
    e("s_mov_b64 exec, s[26:27]")
    for q in 'ab':
        e(f"v_mov_b32 v{Q8[q]}, 0")
        e(f"v_mov_b32 v{Q8[q]+1}, 0")
    e("s_mov_b64 exec, -1")
    e("s_sub_u32 s35, s33, 1")
    e(f"s_mul_i32 s36, s35, {TILE}")
    e(f"v_add_u32 v4, s36, v{aK16}")
    e(f"v_add_u32 v5, s36, v{aK8}")
    e(f"v_mov_b32 v{M['a']}, 0xff800000")
    e(f"v_mov_b32 v{M['b']}, 0xff800000")
    for q in 'ab':
        for r in range(16):
            e(f"v_mov_b32 v{O[q]+r}, 0")
    for r in range(8):
        e(f"v_mov_b32 v{P['b']+r}, 0")
    e(f"{name}_maxloop:")
    e(f"ds_read_b128 {R(K16[1],4)}, v4")
    e("s_mov_b64 exec, s[24:25]")
    e(f"ds_read_b64 {R(K8[1],2)}, v5 offset:1024")
    e("s_mov_b64 exec, -1")
    e(f"v_subrev_u32 v4, {TILE}, v4")
    e(f"v_subrev_u32 v5, {TILE}, v5")
    e("s_waitcnt lgkmcnt(0)")
    for q in 'ab':
        e(f"v_mfma_f32_32x32x16_bf16 {R(S[q],16)}, {R(K16[1],4)}, {R(Q16[q],4)}, 0")
        e(f"v_mfma_f32_32x32x8_bf16 {R(S[q],16)}, {R(K8[1],2)}, {R(Q8[q],2)}, {R(S[q],16)}")
    e("s_nop 10")
    for q in 'ab':
        for r in range(0, 16, 2):
            e(f"v_max3_f32 v{M[q]}, v{S[q]+r}, v{S[q]+r+1}, v{M[q]}")
        if q == 'a':
            e("s_nop 3")
    e("s_sub_u32 s35, s35, 1")
    e("s_cmp_ge_i32 s35, 0")
    e(f"s_cbranch_scc1 {name}_maxloop")
    for q in 'ab':
        m = M[q]
        e(f"v_mov_b32 v{T}, v{m}")
        e("s_nop 1")
        e(f"v_permlane32_swap_b32 v{m}, v{T}")
        e("s_nop 1")
        e(f"v_max_f32 v{m}, v{m}, v{T}")
        e(f"v_sub_f32 v{m}, 0, v{m}")
        e(f"v_and_b32 v{T}, 0xffff0000, v{m}")
        e(f"v_sub_f32 v{T+1}, v{m}, v{T}")
        e(f"v_and_b32 v{T+2}, 0xffff0000, v{T+1}")
        e(f"v_sub_f32 v{T+3}, v{T+1}, v{T+2}")
        e(f"v_lshrrev_b32 v{T}, 16, v{T}")
        e(f"v_or_b32 v{T}, v{T}, v{T+2}")
        e(f"v_lshrrev_b32 v{T+3}, 16, v{T+3}")
        e(f"v_cndmask_b32 v{Q8[q]}, v{Q8[q]}, v{T}, s[26:27]")
        e(f"v_cndmask_b32 v{Q8[q]+1}, v{Q8[q]+1}, v{T+3}, s[26:27]")
    for r in range(12, 16):
        e(f"v_mov_b32 v{S['b']+r}, 0")
    e(f"v_mfma_f32_32x32x16_bf16 {R(S['a'],16)}, {R(K16[1],4)}, {R(Q16['a'],4)}, 0")
    e(f"v_mfma_f32_32x32x8_bf16 {R(S['a'],16)}, {R(K8[1],2)}, {R(Q8['a'],2)}, {R(S['a'],16)}")
    e("s_mov_b32 s35, 0")
    if stamp: e("s_memtime s[50:51]\ns_waitcnt lgkmcnt(0)")
    e("s_nop 10")
    e(".p2align 6")
    e(f"{name}_loop:")

    def E(q, r):
        if opts.get('no_qk'): return f"v_exp_f32 v{S[q]+r}, v{O[q]+r}"
        return f"v_exp_f32 v{S[q]+r}, v{S[q]+r}"
    def C(q, r): return f"v_cvt_pk_bf16_f32 v{P[q]+r//2}, v{S[q]+r}, v{S[q]+r+1}"
    def PV(q, i, s):
        v = V0[s] if i == 0 else V1[s]
        return f"v_mfma_f32_32x32x16_bf16 {R(O[q],16)}, {R(v,4)}, {R(P[q]+4*i,4)}, {R(O[q],16)}"
    def QK16(q, s): return f"v_mfma_f32_32x32x16_bf16 {R(S[q],16)}, {R(K16[s],4)}, {R(Q16[q],4)}, 0"
    def QK8(q, s): return f"v_mfma_f32_32x32x8_bf16 {R(S[q],16)}, {R(K8[s],2)}, {R(Q8[q],2)}, {R(S[q],16)}"

    def phase(q, o, s, extra):
        mf = [PV(o, 0, s), QK16(o, s), QK8(o, s), PV(o, 1, s)]
        if opts.get('no_pv'): mf[0] = mf[3] = None
        if opts.get('no_qk8'): mf[2] = None
        if opts.get('no_qk'): mf[1] = mf[2] = None
        if opts.get('no_pv1'): mf[3] = None
        sched = opts.get('sched', 0)
        if sched == 0:
            for g in range(4):
                e(mf[g])
                e(E(q, 4*g)); e(E(q, 4*g+1))
                if g == 0:
                    e(C(o, 12)); e(C(o, 14))
                else:
                    e(C(q, 4*(g-1))); e(C(q, 4*(g-1)+2))
                e(E(q, 4*g+2))
                for x in extra[g]: e(x)
                e(E(q, 4*g+3))
        elif sched == 1:
            e(mf[0]); e(C(o,12)); e(C(o,14)); e(E(q,0)); e(E(q,1))
            e(mf[3]); e(E(q,2)); e(E(q,3)); e(E(q,4))
            e(mf[1]); e(E(q,5)); e(C(q,0)); e(C(q,2)); e(E(q,6))
            e(mf[2]); e(E(q,7)); e(E(q,8))
            for x in extra[0]: e(x)
            e(E(q,9)); e(C(q,4)); e(C(q,6)); e(E(q,10))
            for x in extra[1]: e(x)
            e(E(q,11)); e(E(q,12))
            for x in extra[2]: e(x)
            e(E(q,13)); e(C(q,8)); e(C(q,10)); e(E(q,14))
            for x in extra[3]: e(x)
            e(E(q,15))
        for _ in range(opts.get('nops', 0)): e("s_nop 0")

    for u in range(U):
        s_prev = (u - 1) & 1
        s_cur = u & 1
        phase('a', 'b', s_prev, [[], [], [], ["s_waitcnt lgkmcnt(0)"]])
        ko = (u + 2) * TILE
        vo = (u + 1) * TILE
        ex = [
            [f"ds_read_b128 {R(K16[s_prev],4)}, v{aK16} offset:{ko}"],
            ["s_mov_b64 exec, s[24:25]",
             f"ds_read_b64 {R(K8[s_prev],2)}, v{aK8} offset:{ko+1024}",
             "s_mov_b64 exec, -1"],
            ["s_mov_b64 exec, s[22:23]",
             f"ds_read_b128 {R(V0[s_prev],4)}, v{aV} offset:{vo+1280}",
             f"ds_read_b128 {R(V1[s_prev],4)}, v{aV} offset:{vo+1920}",
             "s_mov_b64 exec, -1"],
            [],
        ]
        if opts.get('no_exec'):
            ex = [[x for x in g if 'exec' not in x] for g in ex]
        if opts.get('no_ds'):
            ex = [[x for x in g if 'ds_read' not in x] for g in ex]
        if opts.get('half_ds') and u % 2 == 1:
            ex = [[], [], [], []]
        if u == U - 1:
            ex[3] = [f"v_add_u32 v{aK16}, {U*TILE}, v{aK16}",
                     f"v_add_u32 v{aK8}, {U*TILE}, v{aK8}",
                     f"v_add_u32 v{aV}, {U*TILE}, v{aV}",
                     "s_add_u32 s35, s35, 1",
                     "s_cmp_eq_u32 s35, s34"]
        phase('b', 'a', s_cur, ex)
    e(f"s_cbranch_scc1 {name}_sync")
    e(f"{name}_back:")
    e(f"s_cmp_lt_u32 s35, {64//U}")
    e(f"s_cbranch_scc1 {name}_loop")
    if stamp: e("s_memtime s[60:61]\ns_memrealtime s[64:65]")
    s_last = (U - 1) & 1
    e(PV('b', 0, s_last))
    e(C('b', 12)); e(C('b', 14))
    e("s_nop 1")
    e(PV('b', 1, s_last))
    e("s_nop 7")
    e("s_nop 7")
    e("s_mov_b32 s36, 0x53800000")
    e(f"v_cmp_nlt_f32 vcc, v{O['a']+12}, s36") if False else None
    e(f"v_max_f32 v{T}, v{O['a']+12}, v{O['b']+12}")
    e(f"v_add_f32 v{T}, v{O['a']+12}, v{O['b']+12}")
    e(f"v_cmp_ngt_f32 vcc, s36, v{T}")
    e("s_cmp_eq_u32 s33, 64")
    e(f"s_cbranch_scc1 {name}_store")
    e("s_mov_b32 s33, 64")
    e("s_nop 2")
    e(f"s_cbranch_vccnz {name}_restart")
    e(f"{name}_store:")
    for qi, q in enumerate('ab'):
        e(f"v_rcp_f32 v{T}, v{O[q]+12}")
        e("s_nop 0")
        for r in range(12):
            e(f"v_mul_f32 v{O[q]+r}, v{O[q]+r}, v{T}")
        for r in range(6):
            e(f"v_cvt_pk_bf16_f32 v{P[q]+r}, v{O[q]+2*r}, v{O[q]+2*r+1}")
        if qi == 1:
            e("s_add_u32 s31, s31, 40960")
        e(f"buffer_store_dwordx4 {R(P[q],4)}, v{T+8}, s[16:19], s31 offen")
        e("s_mov_b64 exec, s[24:25]")
        e(f"buffer_store_dwordx2 {R(P[q]+4,2)}, v{T+8}, s[16:19], s31 offen offset:32")
        e("s_mov_b64 exec, -1")
    if stamp:
        e("s_memtime s[44:45]")
        e("s_memrealtime s[46:47]")
        e("s_waitcnt lgkmcnt(0)")
        e("s_sub_u32 s44, s44, s40")
        e("s_sub_u32 s46, s46, s42")
        e("v_mov_b32 v4, s44")
        e("v_mov_b32 v5, s46")
        e("v_mov_b32 v6, s40")
        e("v_mov_b32 v7, s42")
        e("s_lshl_b32 s37, s2, 3")
        e("s_add_u32 s37, s37, s11")
        e("s_lshl_b32 s37, s37, 6")
        e(f"s_add_u32 s37, s37, {WS_DBG}")
        e("v_mov_b32 v8, 0")
        e("buffer_store_dwordx4 v[4:7], v8, s[16:19], s37 offen")
        for i, r in enumerate([48, 50, 52, 54, 56, 58, 60]):
            e(f"s_sub_u32 s{r}, s{r}, s40")
            e(f"v_mov_b32 v{12+i}, s{r}")
        e("s_sub_u32 s64, s64, s62")
        e("v_mov_b32 v19, s64")
        e("buffer_store_dwordx4 v[12:15], v8, s[16:19], s37 offen offset:16")
        e("buffer_store_dwordx4 v[16:19], v8, s[16:19], s37 offen offset:32")
    e(f"{name}_end:")
    e("s_endpgm")
    e(f"{name}_sync:")
    e("s_cmp_eq_u32 s34, 2")
    e(f"s_cbranch_scc0 {name}_sync2")
    if stamp: e("s_memtime s[52:53]")
    e("s_waitcnt vmcnt(12)")
    e("s_barrier")
    if stamp: e("s_memtime s[54:55]\ns_waitcnt lgkmcnt(0)")
    e("s_mov_b32 s34, 5")
    e(f"s_branch {name}_back")
    e(f"{name}_sync2:")
    if opts.get('prio'):
        e("s_cmp_eq_u32 s34, 5")
        e(f"s_cbranch_scc1 {name}_sync3")
        e("s_setprio 0")
        e("s_mov_b32 s34, 99")
        e(f"s_branch {name}_back")
        e(f"{name}_sync3:")
    if stamp: e("s_memtime s[56:57]")
    e("s_waitcnt vmcnt(0)")
    e("s_barrier")
    if stamp: e("s_memtime s[58:59]\ns_memrealtime s[62:63]\ns_waitcnt lgkmcnt(0)")
    e(f"s_mov_b32 s34, {opts.get('prio', 99)}")
    e(f"s_branch {name}_back")
    body = "\n".join(x for x in L if x is not None)
    desc = f""".p2align 6
.amdhsa_kernel {name}
  .amdhsa_next_free_vgpr 144
  .amdhsa_next_free_sgpr 80
  .amdhsa_accum_offset 144
  .amdhsa_group_segment_fixed_size 0
  .amdhsa_kernarg_size 88
  .amdhsa_user_sgpr_count 2
  .amdhsa_user_sgpr_kernarg_segment_ptr 1
  .amdhsa_system_sgpr_workgroup_id_x 1
.end_amdhsa_kernel"""
    launch = f"; @launch kernel={name} grid=(256,1,1) block=(512,1,1) lds=163840"
    return launch, body, desc
```

```python
from attn import WS_KV, KV_HEAD, WS_Q, WS_O, WS_DBG, R
import struct

QSCALE = struct.unpack('<I', struct.pack('<f', 1.4426950408889634 / 20 ** 0.5))[0]
KVL = 106496
SIG = [0, 2, 1, 3, 4]

class VM:
    def __init__(self): self.ops = []
    def issue(self, tag): self.ops.append(tag)
    def wait(self, tags):
        last = max(i for i, t in enumerate(self.ops) if t in tags)
        return len(self.ops) - 1 - last

def w_addr_code(e, r, vU, vdst, t0, t1, t2, sstride, per_round):
    if r == 0:
        U = "v0"
    else:
        e(f"v_add_u32 v{vU}, {r*per_round}, v0"); U = f"v{vU}"
    e(f"v_mul_u32_u24 v{t0}, 52429, {U}")
    e(f"v_lshrrev_b32 v{t0}, 19, v{t0}")
    e(f"v_lshrrev_b32 v{t1}, 1, v{t0}")
    e(f"v_xor_b32 v{t1}, v{t1}, v{t0}")
    e(f"v_bfe_u32 v{t1}, v{t1}, 2, 1")
    e(f"v_mul_u32_u24 v{t1}, 12, v{t1}")
    e(f"v_xor_b32 v{t1}, v{t1}, v{t0}")
    e(f"v_mul_u32_u24 v{t1}, {sstride}, v{t1}")
    e(f"v_mul_u32_u24 v{t0}, 10, v{t0}")
    e(f"v_sub_u32 v{t0}, {U}, v{t0}")
    e(f"v_lshl_add_u32 v{vdst}, v{t0}, 4, v{t1}")

ACC = 16
EACC = 56
WF = 64
XF = 120
def acc(b, i): return ACC + (b*5+i)*4
def wf(buf, i): return WF + buf*28 + i*4

def compute_loop(e, vm, kind, extra, XW, events, barriers, vW0, vW1, vKV, xload):
    def xf(s, b): return XF + (s % XW)*8 + b*4
    def reads(s):
        out = []
        buf = s & 1
        base = vW0 if s < 12 else vW1
        so = (s if s < 12 else s - 12) * 5120
        for i in range(5):
            for j in range(2):
                out.append(f"ds_read_b64_tr_b16 {R(wf(buf,i)+2*j,2)}, v{base} offset:{so + j*1280 + 8*i}")
        if extra:
            for i in range(2):
                for j in range(2):
                    out.append(f"ds_read_b64_tr_b16 {R(wf(buf,5+i)+2*j,2)}, v{vKV} offset:{s*1280 + j*160 + 32*i}")
        return out
    def mfma(d, w, x, k, first):
        c = "0" if first else R(d, 4)
        if k == 'T': return f"v_mfma_f32_16x16x32_bf16 {R(d,4)}, {R(w,4)}, {R(x,4)}, {c}"
        return f"v_mfma_f32_16x16x32_bf16 {R(d,4)}, {R(x,4)}, {R(w,4)}, {c}"
    if -1 in barriers:
        if barriers[-1]: e(f"s_waitcnt vmcnt({vm.wait(barriers[-1])})")
        e("s_barrier")
    for x in reads(0): e(x)
    for s in range(20):
        need = {f"x{s}"}
        if s in barriers: need |= set(barriers[s])
        e(f"s_waitcnt vmcnt({vm.wait(need)}) lgkmcnt(0)")
        if s in barriers: e("s_barrier")
        rd = reads(s+1) if s < 19 else []
        ms = []
        buf = s & 1
        for i in range(5):
            for b in range(2):
                ms.append(mfma(acc(b,i), wf(buf,i), xf(s,b), kind, s == 0))
        if extra:
            for i in range(2):
                ms.append(mfma(EACC+4*i, wf(buf,5+i), xf(s,0), extra, s == 0))
        ev = list(events.get(s, []))
        for mi, m in enumerate(ms):
            e(m)
            for x in rd[2*mi:2*mi+2]: e(x)
            if mi >= len(rd)//2 and ev:
                ev.pop(0)()
        for f in ev: f()
    e("s_nop 7")

def t_epilogue(e, scale, stores):
    for b in range(2):
        a0 = acc(b, 0)
        if scale:
            for r in range(0, 20, 2):
                e(f"v_pk_mul_f32 {R(a0+r,2)}, {R(a0+r,2)}, {scale}")
        for r in range(10):
            e(f"v_cvt_pk_bf16_f32 v{a0+r}, v{a0+2*r}, v{a0+2*r+1}")
        stores(b, a0)

def desc(name, vg, sg=80):
    return f""".p2align 6
.amdhsa_kernel {name}
  .amdhsa_next_free_vgpr {vg}
  .amdhsa_next_free_sgpr {sg}
  .amdhsa_accum_offset {vg}
  .amdhsa_group_segment_fixed_size 0
  .amdhsa_kernarg_size 88
  .amdhsa_user_sgpr_count 2
  .amdhsa_user_sgpr_kernarg_segment_ptr 1
  .amdhsa_system_sgpr_workgroup_id_x 1
.end_amdhsa_kernel"""

def lane_consts(e, vX0, vX1, vW0, vW1, swap_sgpr=None):
    e("v_and_b32 v1, 63, v0")
    e("v_and_b32 v2, 15, v0")
    e("v_lshrrev_b32 v3, 4, v1")
    e("v_and_b32 v4, 8, v2")
    e("v_add_u32 v4, v4, v2")
    e(f"v_mul_u32_u24 v{vX0}, 1280, v4")
    e(f"v_lshl_add_u32 v{vX0}, v3, 4, v{vX0}")

def w_lds_addr(e, vW0, vW1, t0, t1):
    e(f"v_lshrrev_b32 v{t0}, 1, v3")
    e(f"v_lshlrev_b32 v{t0}, 4, v{t0}")
    e(f"v_and_b32 v{t1}, 1, v3")
    e(f"v_lshl_add_u32 v{t0}, v{t1}, 2, v{t0}")
    e(f"v_bfe_u32 v{t1}, v1, 2, 2")
    e(f"v_add_u32 v{t0}, v{t0}, v{t1}")
    e(f"v_mul_u32_u24 v{t0}, 160, v{t0}")
    e(f"v_and_b32 v{t1}, 3, v1")
    e(f"v_mul_u32_u24 v{t1}, 40, v{t1}")
    e(f"v_add_u32 v{vW0}, v{t0}, v{t1}")
    e(f"v_add_u32 v{vW1}, 61440, v{vW0}")

def stamp_code(e, slot, waves, sWS, wsg):
    e("s_memtime s[70:71]")
    e("s_memrealtime s[72:73]")
    e("s_waitcnt lgkmcnt(0)")
    e("s_sub_u32 s70, s70, s66")
    e("s_sub_u32 s72, s72, s68")
    e("v_mov_b32 v4, s70")
    e("v_mov_b32 v5, s72")
    e("v_mov_b32 v6, s74")
    e("v_mov_b32 v7, s68")
    e(f"s_mul_i32 s75, s2, {waves}")
    e(f"s_add_u32 s75, s75, {wsg}")
    e("s_lshl_b32 s75, s75, 4")
    e(f"s_add_u32 s75, s75, {WS_DBG + slot*0x40000}")
    e("v_mov_b32 v8, 0")
    e(f"buffer_store_dwordx4 v[4:7], v8, {sWS}, s75 offen")

def proj_kernel(name="proj_kernel", XW=6, stamp=False):
    L = []; e = L.append
    vX = [5, 6]; vW0, vW1, vKV = 7, 8, 9
    vWD = [10, 11, 12, 13, 14]; vKD = 15
    nvg = XF + XW*8
    T0, T1, T2, T3 = nvg, nvg+1, nvg+2, nvg+3
    e(f".globl {name}\n.p2align 8\n.type {name},@function\n{name}:")
    e("s_cmp_ge_u32 s2, 256")
    e(f"s_cbranch_scc1 {name}_end")
    e("s_load_dwordx16 s[16:31], s[0:1], 0")
    e("s_load_dwordx2 s[4:5], s[0:1], 80")
    if stamp: e("s_memtime s[66:67]\ns_memrealtime s[68:69]")
    e("v_lshrrev_b32 v4, 6, v0")
    e("s_and_b32 s6, s2, 7")
    e("v_readfirstlane_b32 s11, v4")
    e("s_lshr_b32 s7, s2, 3")
    e("s_lshr_b32 s8, s6, 1")
    e("s_and_b32 s9, s6, 1")
    e("s_lshl_b32 s9, s9, 2")
    e("s_lshr_b32 s10, s7, 3")
    e("s_add_u32 s9, s9, s10")
    e("s_and_b32 s10, s7, 7")
    lane_consts(e, vX[0], vX[1], vW0, vW1)
    e("s_lshr_b32 s12, s11, 2")
    e("s_lshr_b32 s13, s10, 1")
    e("s_and_b32 s13, s13, 1")
    e("s_and_b32 s14, s10, 1")
    e("s_add_u32 s14, s14, 1")
    e("s_cmp_eq_u32 s12, s13")
    e("s_cselect_b32 s14, s14, 0")
    e("s_cmp_eq_u32 s8, 3")
    e("s_cselect_b32 s14, s14, 0")
    e("s_lshr_b32 s15, s10, 2")
    e("s_cmp_lg_u32 s14, 0")
    e("s_cselect_b32 s15, s15, 0")
    e("s_mul_i32 s12, s15, 10240")
    e("s_sub_u32 s13, 10240, s12")
    e(f"v_add_u32 v{vX[1]}, s13, v{vX[0]}")
    e(f"v_add_u32 v{vX[0]}, s12, v{vX[0]}")
    e("s_lshl_b32 s56, s9, 3")
    e("s_add_u32 s56, s56, s11")
    e("s_mul_i32 s57, s56, 40960")
    e("s_cmp_eq_u32 s8, 3")
    e("s_cselect_b32 s58, 1, 3")
    e("s_mul_i32 s58, s58, 1280")
    e("s_cselect_b32 s59, 0, s8")
    e("s_mul_i32 s59, s59, 1280")
    e("s_mul_i32 s60, s10, 160")
    e("s_add_u32 s59, s59, s60")
    e("s_lshl_b32 s60, s58, 8")
    e("s_lshl_b32 s61, s11, 10")
    e("s_mov_b32 s35, 0x00020000")
    e("s_mov_b32 s39, 0x00020000")
    e("s_mov_b32 s43, 0x00020000")
    e("s_mov_b32 s47, 0x00020000")
    e("s_mov_b32 s34, 2621440")
    e("s_mov_b32 s46, 0x10000000")
    e("s_cmp_eq_u32 s8, 3")
    e("s_mul_i32 s38, s58, 640")
    e("s_cselect_b32 s42, 25600, 0")
    e("s_waitcnt lgkmcnt(0)")
    e("s_cselect_b32 s32, s22, s16")
    e("s_cselect_b32 s33, s23, s17")
    e("s_and_b32 s33, s33, 0xffff")
    vm = VM()
    def xload(s):
        for b in range(2):
            e(f"buffer_load_dwordx4 {R(XF + (s % XW)*8 + b*4, 4)}, v{vX[b]}, s[32:35], s57 offen offset:{s*64}")
            vm.issue(f"x{s}")
    def wload(r):
        e(f"s_add_u32 m0, s61, {r*8192}")
        if r in (5, 10): e("s_add_u32 s59, s59, s60")
        else: e("s_nop 0")
        e(f"buffer_load_dwordx4 v{vWD[r%5]}, s[36:39], s59 offen lds")
        vm.issue(f"w{r}")
    def kvload(r):
        e(f"s_add_u32 m0, s61, {KVL + r*8192}")
        e(f"s_movk_i32 s62, {r*8192}")
        e(f"buffer_load_dwordx4 v{vKD}, s[40:43], s62 offen lds")
        vm.issue(f"kv{r}")
    xload(0); xload(1)
    e("s_cmp_eq_u32 s8, 3")
    e("s_cselect_b32 s36, s24, s18")
    e("s_cselect_b32 s37, s25, s19")
    e("s_and_b32 s37, s37, 0xffff")
    e("s_bitcmp1_b32 s10, 0")
    e("s_cselect_b32 s40, s28, s26")
    e("s_cselect_b32 s41, s29, s27")
    e("s_and_b32 s41, s41, 0xffff")
    e("s_mov_b32 s44, s4")
    e("s_and_b32 s45, s5, 0xffff")
    for r in (0, 1):
        w_addr_code(e, r, T3, vWD[r], T0, T1, T2, "s58", 512); wload(r)
    e(f"v_lshlrev_b32 v{vKD}, 4, v0")
    kvload(0)
    xload(2)
    for r in (2, 3, 4):
        w_addr_code(e, r, T3, vWD[r], T0, T1, T2, "s58", 512); wload(r)
    kvload(1)
    for s in range(3, XW-1): xload(s)
    w_lds_addr(e, vW0, vW1, T0, T1)
    e(f"v_bfe_u32 v{T0}, v1, 2, 2")
    e(f"v_lshl_add_u32 v{T0}, v3, 3, v{T0}")
    e(f"v_mul_u32_u24 v{T0}, 40, v{T0}")
    e(f"v_and_b32 v{T1}, 3, v1")
    e(f"v_lshl_add_u32 v{T0}, v{T1}, 3, v{T0}")
    e(f"v_add_u32 v{vKV}, {KVL}, v{T0}")
    e("s_cmp_eq_u32 s8, 2")
    e(f"s_cbranch_scc1 {name}_V")
    e("s_cmp_eq_u32 s14, 1")
    e(f"s_cbranch_scc1 {name}_QK1")
    e("s_cmp_eq_u32 s14, 2")
    e(f"s_cbranch_scc1 {name}_QK2")
    pro_ops = list(vm.ops)
    barriers = {-1: ["w1", "kv0"], 2: ["w4", "kv1"], 7: ["w8", "kv2"], 13: ["w12", "kv3"]}
    other = [lambda: wload(5), lambda: wload(6), lambda: wload(7), lambda: wload(8), lambda: kvload(2),
             lambda: wload(9), lambda: wload(10), lambda: wload(11), lambda: wload(12), lambda: kvload(3)]
    for var, kind, extra in (("QK0", 'T', None), ("QK1", 'T', 'T'), ("QK2", 'T', 'N'), ("V", 'N', None)):
        e(f"{name}_{var}:")
        vm.ops = list(pro_ops)
        events = {}
        for s in range(20):
            ev = []
            if s < len(other): ev.append(other[s])
            if s + XW - 1 < 20: ev.append(lambda s=s: xload(s + XW - 1))
            events[s] = ev
        compute_loop(e, vm, kind, extra, XW, events, barriers, vW0, vW1, vKV, xload)
        if kind == 'T':
            e("s_cmp_eq_u32 s8, 1")
            e("s_cselect_b32 s49, 2, 1")
            e("s_mul_i32 s49, s49, 1280")
            e("s_mul_i32 s48, s49, 64")
            e(f"s_cselect_b32 s50, {WS_KV}, {WS_Q}")
            e(f"s_cselect_b32 s52, 1.0, {QSCALE}")
            e("s_mov_b32 s53, s52")
            e("s_cmp_eq_u32 s8, 3")
            e("s_cselect_b32 s51, 32, 0")
            e("s_lshl_b32 s54, s10, 2")
            e("s_add_u32 s51, s51, s54")
            e("s_mul_i32 s51, s51, s48")
            e("s_add_u32 s50, s50, s51")
            e("s_mul_i32 s51, s56, s49")
            e("s_add_u32 s50, s50, s51")
            e(f"v_mul_lo_u32 v{T0}, v3, s48")
            e("s_lshl_b32 s54, s15, 3")
            e("s_sub_u32 s55, 8, s54")
            e(f"v_add_u32 v{vX[0]}, s54, v4")
            e(f"v_add_u32 v{vX[1]}, s55, v4")
            def stores(b, a0):
                e(f"v_lshl_add_u32 v{T1}, v{vX[b]}, 4, v{T0}")
                e(f"v_lshl_add_u32 v{T2}, v{vX[b]}, 3, v{T0}")
                e(f"buffer_store_dwordx4 {R(a0,4)}, v{T1}, s[44:47], s50 offen")
                e(f"buffer_store_dwordx4 {R(a0+4,4)}, v{T1}, s[44:47], s50 offen offset:512")
                e(f"buffer_store_dwordx2 {R(a0+8,2)}, v{T2}, s[44:47], s50 offen offset:1024")
            t_epilogue(e, "s[52:53]", stores)
            if extra:
                e("s_mul_i32 s50, s56, 2560")
                e(f"s_add_u32 s50, s50, {WS_KV + 32*KV_HEAD}")
                for r in range(4):
                    e(f"v_cvt_pk_bf16_f32 v{EACC+r}, v{EACC+2*r}, v{EACC+2*r+1}")
            if extra == 'T':
                e(f"v_lshrrev_b32 v{T0}, 1, v3")
                e(f"v_lshlrev_b32 v{T0}, 9, v{T0}")
                e(f"v_lshl_add_u32 v{T0}, v{vX[0]}, 4, v{T0}")
                e(f"v_and_b32 v{T1}, 1, v3")
                e(f"v_lshl_add_u32 v{T0}, v{T1}, 3, v{T0}")
                e(f"v_lshlrev_b32 v{T1}, 3, v{vX[0]}")
                e(f"buffer_store_dwordx2 {R(EACC,2)}, v{T0}, s[44:47], s50 offen")
                e("s_mov_b64 exec, 0xffff")
                e(f"buffer_store_dwordx2 {R(EACC+2,2)}, v{T1}, s[44:47], s50 offen offset:1024")
                e("s_mov_b64 exec, -1")
            if extra == 'N':
                e(f"v_mul_u32_u24 v{T0}, 320, v3")
                e(f"v_add_u32 v{T0}, s54, v{T0}")
                e(f"v_lshrrev_b32 v{T1}, 1, v2")
                e(f"v_xor_b32 v{T1}, v{T1}, v2")
                e(f"v_bfe_u32 v{T1}, v{T1}, 2, 1")
                e(f"v_mul_u32_u24 v{T1}, 12, v{T1}")
                e(f"v_xor_b32 v{T1}, v{T1}, v2")
                e(f"v_lshl_add_u32 v{T0}, v{T1}, 4, v{T0}")
                e(f"buffer_store_dwordx2 {R(EACC,2)}, v{T0}, s[44:47], s50 offen offset:1280")
                e("s_mov_b32 s54, 0x000f000f")
                e("s_mov_b32 s55, 0x000f000f")
                e("s_mov_b64 exec, s[54:55]")
                e(f"buffer_store_dwordx2 {R(EACC+2,2)}, v{T0}, s[44:47], s50 offen offset:{1280+256}")
                e("s_mov_b64 exec, -1")
        else:
            e(f"s_mul_i32 s50, s10, {4*KV_HEAD}")
            e("s_mul_i32 s51, s56, 2560")
            e("s_add_u32 s50, s50, s51")
            e(f"s_mov_b32 s48, {KV_HEAD}")
            e(f"v_lshrrev_b32 v{T0}, 2, v2")
            e(f"v_mul_lo_u32 v{T0}, v{T0}, s48")
            e(f"v_mul_u32_u24 v{T1}, 320, v3")
            e(f"v_add_u32 v{T0}, v{T0}, v{T1}")
            e(f"v_and_b32 v{T1}, 3, v2")
            e(f"v_lshl_add_u32 v{T0}, v{T1}, 4, v{T0}")
            for i in range(5):
                d = wf(0, i)
                for b in range(2):
                    for r in range(2):
                        e(f"v_cvt_pk_bf16_f32 v{d+2*b+r}, v{acc(b,i)+2*r}, v{acc(b,i)+2*r+1}")
                e(f"buffer_store_dwordx4 {R(d,4)}, v{T0}, s[44:47], s50 offen offset:{1280 + 64*SIG[i]}")
        if stamp:
            e("s_waitcnt vmcnt(0)")
            stamp_code(e, 1, 8, "s[44:47]", "s11")
        e("s_endpgm")
    e(f"{name}_end:")
    e("s_endpgm")
    launch = f"; @launch kernel={name} grid=(256,1,1) block=(512,1,1) lds={KVL+32768}"
    return launch, "\n".join(L), desc(name, (nvg+4+7)//8*8)

def outp_kernel(name="outp_kernel", XW=10, stamp=False):
    L = []; e = L.append
    vX = [5, 6]; vW0, vW1 = 7, 8
    vWD = [10, 11, 12, 13, 14]
    nvg = XF + XW*8
    T0, T1, T2, T3 = nvg, nvg+1, nvg+2, nvg+3
    e(f".globl {name}\n.p2align 8\n.type {name},@function\n{name}:")
    e("s_cmp_ge_u32 s2, 256")
    e(f"s_cbranch_scc1 {name}_end")
    e("s_load_dwordx2 s[16:17], s[0:1], 16")
    e("s_load_dwordx4 s[20:23], s[0:1], 56")
    e("s_load_dwordx2 s[4:5], s[0:1], 80")
    if stamp: e("s_memtime s[66:67]\ns_memrealtime s[68:69]")
    e("v_lshrrev_b32 v4, 6, v0")
    e("s_and_b32 s6, s2, 7")
    e("v_readfirstlane_b32 s11, v4")
    e("s_lshr_b32 s7, s2, 3")
    e("s_lshr_b32 s8, s6, 2")
    e("s_and_b32 s9, s6, 3")
    e("s_lshl_b32 s9, s9, 2")
    e("s_lshr_b32 s10, s7, 3")
    e("s_add_u32 s9, s9, s10")
    e("s_and_b32 s10, s7, 7")
    e("s_mov_b32 s35, 0x00020000")
    e("s_mov_b32 s39, 0x00020000")
    e("s_mov_b32 s47, 0x00020000")
    e("s_mov_b32 s34, 0x10000000")
    e("s_mov_b32 s38, 819200")
    e("s_mov_b32 s46, 5242880")
    e("s_cmp_ge_u32 s11, 4")
    e(f"s_cbranch_scc1 {name}_loader")
    lane_consts(e, vX[0], vX[1], vW0, vW1)
    e(f"v_add_u32 v{vX[1]}, 10240, v{vX[0]}")
    e("s_lshl_b32 s56, s9, 2")
    e("s_add_u32 s56, s56, s11")
    e("s_mul_i32 s57, s56, 40960")
    e("s_mul_i32 s58, s8, 2621440")
    e("s_add_u32 s57, s57, s58")
    e(f"s_add_u32 s57, s57, {WS_O}")
    e("s_waitcnt lgkmcnt(0)")
    e("s_mov_b32 s32, s4")
    e("s_and_b32 s33, s5, 0xffff")
    vm = VM()
    def xload(s):
        for b in range(2):
            e(f"buffer_load_dwordx4 {R(XF + (s % XW)*8 + b*4, 4)}, v{vX[b]}, s[32:35], s57 offen offset:{s*64}")
            vm.issue(f"x{s}")
    for s in range(XW-1): xload(s)
    e("s_mov_b32 s44, s22")
    e("s_and_b32 s45, s23, 0xffff")
    w_lds_addr(e, vW0, vW1, T0, T1)
    BS = [-1, 2, 7, 13]
    barriers = {b: [] for b in BS}
    events = {s: ([lambda s=s: xload(s + XW - 1)] if s + XW - 1 < 20 else []) for s in range(20)}
    compute_loop(e, vm, 'T', None, XW, events, barriers, vW0, vW1, None, xload)
    e("s_mul_i32 s50, s56, 81920")
    e("s_mul_i32 s51, s8, 1280")
    e("s_add_u32 s50, s50, s51")
    e("s_mul_i32 s51, s10, 160")
    e("s_add_u32 s50, s50, s51")
    e(f"v_mul_u32_u24 v{T0}, 2560, v4")
    e(f"v_mul_u32_u24 v{T1}, 40, v3")
    e(f"v_add_u32 v{T0}, v{T0}, v{T1}")
    e(f"v_add_u32 v{T1}, 20480, v{T0}")
    def stores(b, a0):
        e(f"buffer_store_dwordx4 {R(a0,4)}, v{T0+b}, s[44:47], s50 offen")
        e(f"buffer_store_dwordx4 {R(a0+4,4)}, v{T0+b}, s[44:47], s50 offen offset:16")
        e(f"buffer_store_dwordx2 {R(a0+8,2)}, v{T0+b}, s[44:47], s50 offen offset:32")
    t_epilogue(e, None, stores)
    if stamp:
        e("s_waitcnt vmcnt(0)")
        stamp_code(e, 2, 4, "s[32:35]", "s11")
    e(f"{name}_end:")
    e("s_endpgm")
    e(f"{name}_loader:")
    e("v_and_b32 v0, 255, v0")
    e("s_mul_i32 s59, s10, 160")
    e("s_lshl_b32 s61, s11, 10")
    e("s_sub_u32 s61, s61, 4096")
    e("s_movk_i32 s58, 1280")
    w_addr_code(e, 0, T3, vWD[0], T0, T1, T2, "s58", 256)
    e("s_cmp_eq_u32 s8, 0")
    e("s_waitcnt lgkmcnt(0)")
    e("s_cselect_b32 s36, s16, s20")
    e("s_cselect_b32 s37, s17, s21")
    e("s_and_b32 s37, s37, 0xffff")
    for r in range(25):
        if 0 < r < 5: w_addr_code(e, r, T3, vWD[r], T0, T1, T2, "s58", 256)
        e(f"s_add_u32 m0, s61, {r*4096}")
        if r % 5 == 0 and r: e(f"s_add_u32 s59, s59, {128*1280}")
        else: e("s_nop 0")
        e(f"buffer_load_dwordx4 v{vWD[r%5]}, s[36:39], s59 offen lds")
    for last in (3, 9, 17, 24):
        e(f"s_waitcnt vmcnt({24-last})")
        e("s_barrier")
    e("s_endpgm")
    launch = f"; @launch kernel={name} grid=(256,1,1) block=(512,1,1) lds=102400"
    return launch, "\n".join(L), desc(name, (nvg+4+7)//8*8)
```

```python
from build import build, check
from attn import attn_kernel
from gemm import proj_kernel, outp_kernel, desc
def noop(name="noop_kernel"):
    return (f"; @launch kernel={name} grid=(256,1,1) block=(64,1,1) lds=0",
            f".globl {name}\n.p2align 8\n.type {name},@function\n{name}:\ns_endpgm", desc(name, 8, 16))
build([proj_kernel(), attn_kernel(opts={'prio': 13}), outp_kernel(), noop(), noop(), noop(), noop()], 'e_noop4.s')
build([noop(), noop(), noop(), noop(), proj_kernel(), attn_kernel(opts={'prio': 13}), outp_kernel()], 'e_noop4pre.s')
build([proj_kernel(), proj_kernel(), attn_kernel(opts={'prio': 13}), outp_kernel(), outp_kernel()], 'e_dup.s')
check('e_noop4.s')
```

```python
WS_KV = 0
KV_HEAD = 163840
WS_Q = 0x600000
WS_O = 0xC00000
WS_DBG = 0x1400000
TILE = 2560

def R(b, n): return f"v[{b}:{b+n-1}]"

def attn_kernel(name="attn_kernel", U=4, stamp=False, opts=None):
    opts = opts or {}
    L = []
    e = L.append
    aK16, aK8, aV = 1, 2, 3
    Q16 = {'a': 8, 'b': 16}
    Q8 = {'a': 12, 'b': 14}
    K16 = [20, 36]; V0 = [24, 40]; V1 = [28, 44]; K8 = [32, 34]
    P = {'a': 48, 'b': 56}
    S = {'a': 64, 'b': 80}
    O = {'a': 96, 'b': 112}
    M = {'a': 128, 'b': 129}
    T = 130
    e(f".globl {name}\n.p2align 8\n.type {name},@function\n{name}:")
    e("s_cmp_ge_u32 s2, 256")
    e(f"s_cbranch_scc1 {name}_end")
    e("s_load_dwordx2 s[4:5], s[0:1], 80")
    e("s_load_dwordx2 s[68:69], s[0:1], 16")
    e("s_load_dwordx2 s[70:71], s[0:1], 56")
    if stamp:
        e("s_memtime s[40:41]")
        e("s_memrealtime s[42:43]")
    e("s_and_b32 s6, s2, 7")
    e("s_lshr_b32 s7, s2, 3")
    e("s_lshr_b32 s8, s7, 4")
    e("s_lshr_b32 s9, s7, 2")
    e("s_and_b32 s9, s9, 3")
    e("s_lshl_b32 s6, s6, 2")
    e("s_add_u32 s9, s9, s6")
    e("s_and_b32 s10, s7, 3")
    e("v_lshrrev_b32 v4, 6, v0")
    e("v_and_b32 v5, 63, v0")
    e("v_readfirstlane_b32 s11, v4")
    e("s_cmp_eq_u32 s8, 0")
    e("s_cselect_b32 s12, s9, 32")
    e(f"s_mul_i32 s12, s12, {KV_HEAD}")
    e("s_lshl_b32 s13, s8, 5")
    e("s_add_u32 s13, s13, s9")
    e("s_lshl_b32 s13, s13, 6")
    e("s_lshl_b32 s14, s10, 4")
    e("s_add_u32 s13, s13, s14")
    e("s_lshl_b32 s14, s11, 1")
    e("s_add_u32 s13, s13, s14")
    e("s_mul_i32 s13, s13, 1280")
    e(f"s_add_u32 s13, s13, {WS_Q}")
    e("v_lshlrev_b32 v6, 4, v5")
    e("v_lshlrev_b32 v7, 3, v5")
    e("s_lshl_b32 s15, s11, 10")
    e("v_add_u32 v4, s15, v6")
    e("s_waitcnt lgkmcnt(0)")
    e("s_mov_b32 s16, s4")
    e("s_and_b32 s17, s5, 0xffff")
    e("s_mov_b32 s18, 0x10000000")
    e("s_mov_b32 s19, 0x00020000")
    e(f"buffer_load_dwordx4 {R(Q16['a'],4)}, v6, s[16:19], s13 offen")
    e(f"buffer_load_dwordx2 {R(Q8['a'],2)}, v7, s[16:19], s13 offen offset:1024")
    e(f"buffer_load_dwordx4 {R(Q16['b'],4)}, v6, s[16:19], s13 offen offset:1280")
    e(f"buffer_load_dwordx2 {R(Q8['b'],2)}, v7, s[16:19], s13 offen offset:2304")
    e("s_mov_b32 s20, s12")
    e("s_mov_b32 s21, s15")
    for i in range(3):
        e("s_mov_b32 m0, s21")
        e("s_add_u32 s21, s21, 8192")
        e("buffer_load_dwordx4 v4, s[16:19], s20 offen lds")
        e("s_add_u32 s20, s20, 8192")
    e("s_mov_b32 s22, 0x000fffff")
    e("s_mov_b32 s23, 0x000fffff")
    e("s_mov_b32 s24, -1")
    e("s_mov_b32 s25, 0")
    e("s_mov_b32 s26, 0")
    e("s_mov_b32 s27, -1")
    e("s_mov_b32 s28, 0x11000000")
    e("s_mov_b32 s29, 0x11000000")
    e(f"v_mov_b32 v{T}, 0x3f803f80")
    e(f"v_cndmask_b32 v{T+1}, 0, v{T}, s[28:29]")
    for s in range(2):
        for r in range(4):
            e(f"v_mov_b32 v{V0[s]+r}, v{T+1}")
            e(f"v_mov_b32 v{V1[s]+r}, v{T+1}")
        e(f"v_mov_b32 v{K8[s]}, 0x3f803f80")
        e(f"v_mov_b32 v{K8[s]+1}, 0x00003f80")
    e("v_and_b32 v6, 31, v5")
    e("v_lshrrev_b32 v7, 5, v5")
    e(f"v_bfe_u32 v{T+8}, v5, 4, 1")
    e(f"v_mul_u32_u24 v{T+8}, 20480, v{T+8}")
    e(f"v_and_b32 v{T+9}, 15, v5")
    e(f"v_lshl_add_u32 v{T+8}, v{T+9}, 4, v{T+8}")
    e(f"v_lshl_add_u32 v{T+8}, v7, 8, v{T+8}")
    e("s_lshl_b32 s31, s8, 7")
    e("s_lshl_b32 s32, s10, 5")
    e("s_add_u32 s31, s31, s32")
    e("s_lshl_b32 s32, s11, 2")
    e("s_add_u32 s31, s31, s32")
    e("s_mul_i32 s31, s31, 20480")
    e("s_lshr_b32 s32, s9, 3")
    e("s_mul_i32 s32, s32, 5120")
    e("s_add_u32 s31, s31, s32")
    e(f"s_add_u32 s31, s31, {WS_O}")
    e("s_bfe_u32 s32, s9, 0x10002")
    e("s_lshl_b32 s38, s32, 9")
    e("s_and_b32 s32, s9, 1")
    e("s_lshl_b32 s32, s32, 8")
    e("s_add_u32 s38, s38, s32")
    e("s_and_b32 s32, s9, 2")
    e("s_lshl_b32 s32, s32, 2")
    e("s_add_u32 s38, s38, s32")
    e("s_add_u32 s38, s38, s31")
    e("s_add_u32 s38, s38, 4096")
    e("s_and_b32 s32, s9, 7")
    e("s_lshl_b32 s32, s32, 9")
    e("s_add_u32 s31, s31, s32")
    e(f"v_lshlrev_b32 v{T+5}, 4, v5")
    e(f"v_lshlrev_b32 v{T+6}, 3, v6")
    e("s_movk_i32 s30, 320")
    e(f"v_mul_lo_u32 v{T+7}, v7, s30")
    e(f"v_lshl_add_u32 v{T+7}, v6, 4, v{T+7}")
    e("s_mov_b32 s33, 1")
    e("s_mov_b32 s34, 2")
    e("s_waitcnt vmcnt(0)")
    e("s_barrier")
    if stamp: e("s_memtime s[48:49]")
    e("s_cmp_ge_u32 s11, 4")
    e(f"s_cbranch_scc0 {name}_restart")
    e("v_subrev_u32 v4, 4096, v4")
    e("s_sub_u32 s21, s21, 4096")
    e("s_mov_b32 s35, 34")
    e(f"{name}_dma:")
    e("s_mov_b32 m0, s21")
    e("s_add_u32 s21, s21, 4096")
    e("buffer_load_dwordx4 v4, s[16:19], s20 offen lds")
    e("s_add_u32 s20, s20, 4096")
    e("s_sub_u32 s35, s35, 1")
    e("s_cmp_lg_u32 s35, 0")
    e(f"s_cbranch_scc1 {name}_dma")
    e("s_mov_b32 s34, 0")
    e(f"{name}_restart:")
    e(f"v_mov_b32 v{aK16}, v{T+5}")
    e(f"v_mov_b32 v{aK8}, v{T+6}")
    e(f"v_mov_b32 v{aV}, v{T+7}")
    e(f"ds_read_b128 {R(K16[0],4)}, v{aK16} offset:{TILE}")
    e("s_mov_b64 exec, s[24:25]")
    e(f"ds_read_b64 {R(K8[0],2)}, v{aK8} offset:{TILE+1024}")
    e("s_mov_b64 exec, s[22:23]")
    e(f"ds_read_b128 {R(V0[0],4)}, v{aV} offset:1280")
    e(f"ds_read_b128 {R(V1[0],4)}, v{aV} offset:1920")
    e("s_mov_b64 exec, s[26:27]")
    for q in 'ab':
        e(f"v_mov_b32 v{Q8[q]}, 0")
        e(f"v_mov_b32 v{Q8[q]+1}, 0")
    e("s_mov_b64 exec, -1")
    e("s_sub_u32 s35, s33, 1")
    e(f"s_mul_i32 s36, s35, {TILE}")
    e(f"v_add_u32 v4, s36, v{aK16}")
    e(f"v_add_u32 v5, s36, v{aK8}")
    e(f"v_mov_b32 v{M['a']}, 0xff800000")
    e(f"v_mov_b32 v{M['b']}, 0xff800000")
    for q in 'ab':
        for r in range(16):
            e(f"v_mov_b32 v{O[q]+r}, 0")
    for r in range(8):
        e(f"v_mov_b32 v{P['b']+r}, 0")
    e(f"{name}_maxloop:")
    e(f"ds_read_b128 {R(K16[1],4)}, v4")
    e("s_mov_b64 exec, s[24:25]")
    e(f"ds_read_b64 {R(K8[1],2)}, v5 offset:1024")
    e("s_mov_b64 exec, -1")
    e(f"v_subrev_u32 v4, {TILE}, v4")
    e(f"v_subrev_u32 v5, {TILE}, v5")
    e("s_waitcnt lgkmcnt(0)")
    for q in 'ab':
        e(f"v_mfma_f32_32x32x16_bf16 {R(S[q],16)}, {R(K16[1],4)}, {R(Q16[q],4)}, 0")
        e(f"v_mfma_f32_32x32x8_bf16 {R(S[q],16)}, {R(K8[1],2)}, {R(Q8[q],2)}, {R(S[q],16)}")
    e("s_nop 10")
    for q in 'ab':
        for r in range(0, 16, 2):
            e(f"v_max3_f32 v{M[q]}, v{S[q]+r}, v{S[q]+r+1}, v{M[q]}")
        if q == 'a':
            e("s_nop 3")
    e("s_sub_u32 s35, s35, 1")
    e("s_cmp_ge_i32 s35, 0")
    e(f"s_cbranch_scc1 {name}_maxloop")
    for q in 'ab':
        m = M[q]
        e(f"v_mov_b32 v{T}, v{m}")
        e("s_nop 1")
        e(f"v_permlane32_swap_b32 v{m}, v{T}")
        e("s_nop 1")
        e(f"v_max_f32 v{m}, v{m}, v{T}")
        e(f"v_sub_f32 v{m}, 0, v{m}")
        e(f"v_and_b32 v{T}, 0xffff0000, v{m}")
        e(f"v_sub_f32 v{T+1}, v{m}, v{T}")
        e(f"v_and_b32 v{T+2}, 0xffff0000, v{T+1}")
        e(f"v_sub_f32 v{T+3}, v{T+1}, v{T+2}")
        e(f"v_lshrrev_b32 v{T}, 16, v{T}")
        e(f"v_or_b32 v{T}, v{T}, v{T+2}")
        e(f"v_lshrrev_b32 v{T+3}, 16, v{T+3}")
        e(f"v_cndmask_b32 v{Q8[q]}, v{Q8[q]}, v{T}, s[26:27]")
        e(f"v_cndmask_b32 v{Q8[q]+1}, v{Q8[q]+1}, v{T+3}, s[26:27]")
    for r in range(12, 16):
        e(f"v_mov_b32 v{S['b']+r}, 0")
    e(f"v_mfma_f32_32x32x16_bf16 {R(S['a'],16)}, {R(K16[1],4)}, {R(Q16['a'],4)}, 0")
    e(f"v_mfma_f32_32x32x8_bf16 {R(S['a'],16)}, {R(K8[1],2)}, {R(Q8['a'],2)}, {R(S['a'],16)}")
    e("s_mov_b32 s35, 0")
    e("s_cmp_eq_u32 s34, 0")
    e(f"s_cbranch_scc1 {name}_sync")
    e(f"{name}_enter:")
    if stamp: e("s_memtime s[50:51]\ns_waitcnt lgkmcnt(0)")
    e("s_nop 10")
    e(".p2align 6")
    e(f"{name}_loop:")

    def E(q, r):
        if opts.get('no_qk'): return f"v_exp_f32 v{S[q]+r}, v{O[q]+r}"
        return f"v_exp_f32 v{S[q]+r}, v{S[q]+r}"
    def C(q, r): return f"v_cvt_pk_bf16_f32 v{P[q]+r//2}, v{S[q]+r}, v{S[q]+r+1}"
    def PV(q, i, s):
        v = V0[s] if i == 0 else V1[s]
        return f"v_mfma_f32_32x32x16_bf16 {R(O[q],16)}, {R(v,4)}, {R(P[q]+4*i,4)}, {R(O[q],16)}"
    def QK16(q, s): return f"v_mfma_f32_32x32x16_bf16 {R(S[q],16)}, {R(K16[s],4)}, {R(Q16[q],4)}, 0"
    def QK8(q, s): return f"v_mfma_f32_32x32x8_bf16 {R(S[q],16)}, {R(K8[s],2)}, {R(Q8[q],2)}, {R(S[q],16)}"

    def phase(q, o, s, extra):
        mf = [PV(o, 0, s), QK16(o, s), QK8(o, s), PV(o, 1, s)]
        if opts.get('no_pv'): mf[0] = mf[3] = None
        if opts.get('no_qk8'): mf[2] = None
        if opts.get('no_qk'): mf[1] = mf[2] = None
        if opts.get('no_pv1'): mf[3] = None
        sched = opts.get('sched', 0)
        if sched == 0:
            for g in range(4):
                e(mf[g])
                e(E(q, 4*g)); e(E(q, 4*g+1))
                if g == 0:
                    e(C(o, 12)); e(C(o, 14))
                else:
                    e(C(q, 4*(g-1))); e(C(q, 4*(g-1)+2))
                e(E(q, 4*g+2))
                for x in extra[g]: e(x)
                e(E(q, 4*g+3))
        elif sched == 1:
            e(mf[0]); e(C(o,12)); e(C(o,14)); e(E(q,0)); e(E(q,1))
            e(mf[3]); e(E(q,2)); e(E(q,3)); e(E(q,4))
            e(mf[1]); e(E(q,5)); e(C(q,0)); e(C(q,2)); e(E(q,6))
            e(mf[2]); e(E(q,7)); e(E(q,8))
            for x in extra[0]: e(x)
            e(E(q,9)); e(C(q,4)); e(C(q,6)); e(E(q,10))
            for x in extra[1]: e(x)
            e(E(q,11)); e(E(q,12))
            for x in extra[2]: e(x)
            e(E(q,13)); e(C(q,8)); e(C(q,10)); e(E(q,14))
            for x in extra[3]: e(x)
            e(E(q,15))
        for _ in range(opts.get('nops', 0)): e("s_nop 0")

    for u in range(U):
        s_prev = (u - 1) & 1
        s_cur = u & 1
        phase('a', 'b', s_prev, [[], [], [], ["s_waitcnt lgkmcnt(0)"]])
        ko = (u + 2) * TILE
        vo = (u + 1) * TILE
        ex = [
            [f"ds_read_b128 {R(K16[s_prev],4)}, v{aK16} offset:{ko}"],
            ["s_mov_b64 exec, s[24:25]",
             f"ds_read_b64 {R(K8[s_prev],2)}, v{aK8} offset:{ko+1024}",
             "s_mov_b64 exec, -1"],
            ["s_mov_b64 exec, s[22:23]",
             f"ds_read_b128 {R(V0[s_prev],4)}, v{aV} offset:{vo+1280}",
             f"ds_read_b128 {R(V1[s_prev],4)}, v{aV} offset:{vo+1920}",
             "s_mov_b64 exec, -1"],
            [],
        ]
        if opts.get('no_exec'):
            ex = [[x for x in g if 'exec' not in x] for g in ex]
        if opts.get('no_ds'):
            ex = [[x for x in g if 'ds_read' not in x] for g in ex]
        if opts.get('half_ds') and u % 2 == 1:
            ex = [[], [], [], []]
        if u == U - 1:
            ex[3] = [f"v_add_u32 v{aK16}, {U*TILE}, v{aK16}",
                     f"v_add_u32 v{aK8}, {U*TILE}, v{aK8}",
                     f"v_add_u32 v{aV}, {U*TILE}, v{aV}",
                     "s_add_u32 s35, s35, 1",
                     "s_cmp_eq_u32 s35, s34"]
        phase('b', 'a', s_cur, ex)
    e(f"s_cbranch_scc1 {name}_sync")
    e(f"{name}_back:")
    e(f"s_cmp_lt_u32 s35, {64//U}")
    e(f"s_cbranch_scc1 {name}_loop")
    if stamp: e("s_memtime s[60:61]\ns_memrealtime s[64:65]")
    s_last = (U - 1) & 1
    e(PV('b', 0, s_last))
    e(C('b', 12)); e(C('b', 14))
    e("s_nop 1")
    e(PV('b', 1, s_last))
    e("s_nop 7")
    e("s_nop 7")
    e("s_mov_b32 s36, 0x53800000")
    e(f"v_add_f32 v{T}, v{O['a']+12}, v{O['b']+12}")
    e(f"v_cmp_ngt_f32 vcc, s36, v{T}")
    e("s_cmp_eq_u32 s33, 64")
    e(f"s_cbranch_scc1 {name}_store")
    e("s_mov_b32 s33, 64")
    e("s_nop 2")
    e(f"s_cbranch_vccnz {name}_restart")
    e(f"{name}_store:")
    for qi, q in enumerate('ab'):
        e(f"v_rcp_f32 v{T}, v{O[q]+12}")
        e("s_nop 0")
        for r in range(12):
            e(f"v_mul_f32 v{O[q]+r}, v{O[q]+r}, v{T}")
        for r in range(6):
            e(f"v_cvt_pk_bf16_f32 v{P[q]+r}, v{O[q]+2*r}, v{O[q]+2*r+1}")
        if qi == 1:
            e("s_add_u32 s31, s31, 40960")
            e("s_add_u32 s38, s38, 40960")
        st = opts.get('st', '')
        e(f"buffer_store_dwordx4 {R(P[q],4)}, v{T+8}, s[16:19], s31 offen{st}")
        e("s_mov_b64 exec, s[24:25]")
        e(f"buffer_store_dwordx2 {R(P[q]+4,2)}, v{T+8}, s[16:19], s38 offen{st}")
        e("s_mov_b64 exec, -1")
    if stamp:
        e("s_memtime s[44:45]")
        e("s_memrealtime s[46:47]")
        e("s_waitcnt lgkmcnt(0)")
        e("s_sub_u32 s44, s44, s40")
        e("s_sub_u32 s46, s46, s42")
        e("v_mov_b32 v4, s44")
        e("v_mov_b32 v5, s46")
        e("v_mov_b32 v6, s40")
        e("v_mov_b32 v7, s42")
        e("s_lshl_b32 s37, s2, 3")
        e("s_add_u32 s37, s37, s11")
        e("s_lshl_b32 s37, s37, 6")
        e(f"s_add_u32 s37, s37, {WS_DBG}")
        e("v_mov_b32 v8, 0")
        e("buffer_store_dwordx4 v[4:7], v8, s[16:19], s37 offen")
        for i, r in enumerate([48, 50, 52, 54, 56, 58, 60]):
            e(f"s_sub_u32 s{r}, s{r}, s40")
            e(f"v_mov_b32 v{12+i}, s{r}")
        e("s_sub_u32 s64, s64, s62")
        e("v_mov_b32 v19, s64")
        e("buffer_store_dwordx4 v[12:15], v8, s[16:19], s37 offen offset:16")
        e("buffer_store_dwordx4 v[16:19], v8, s[16:19], s37 offen offset:32")
    e(f"{name}_end:")
    e("s_endpgm")
    e(f"{name}_sync:")
    e("s_cmp_gt_u32 s34, 2")
    e(f"s_cbranch_scc1 {name}_sync2")
    if stamp: e("s_memtime s[52:53]")
    e("s_waitcnt vmcnt(0)")
    e("s_barrier")
    if stamp: e("s_memtime s[54:55]\ns_memtime s[58:59]\ns_memrealtime s[62:63]\ns_waitcnt lgkmcnt(0)")
    e("s_mov_b32 s34, 99")
    e("s_cmp_eq_u32 s35, 2")
    e(f"s_cbranch_scc1 {name}_pfw")
    e("s_setprio 1")
    e(f"s_mov_b32 s34, {opts.get('prio', 13)}")
    e(f"s_branch {name}_enter")
    e(f"{name}_pfw:")
    if opts.get('pfw', 1):
        e("s_bitcmp1_b32 s2, 2")
        e("s_cselect_b32 s72, s70, s68")
        e("s_cselect_b32 s73, s71, s69")
        e("s_and_b32 s73, s73, 0xffff")
        e("s_mov_b32 s74, 819200")
        e("s_mov_b32 s75, 0x00020000")
        e("s_lshl_b32 s76, s7, 2")
        e("s_add_u32 s76, s76, s11")
        e("s_mul_i32 s76, s76, 6400")
        e(f"v_lshlrev_b32 v{T+9}, 3, v{T+5}")
        e(f"buffer_load_dword v{T+10}, v{T+9}, s[72:75], s76 offen")
    e(f"s_branch {name}_back")
    e(f"{name}_sync2:")
    e("s_setprio 0")
    e("s_mov_b32 s34, 99")
    e(f"s_branch {name}_back")
    body = "\n".join(x for x in L if x is not None)
    desc = f""".p2align 6
.amdhsa_kernel {name}
  .amdhsa_next_free_vgpr 144
  .amdhsa_next_free_sgpr 80
  .amdhsa_accum_offset 144
  .amdhsa_group_segment_fixed_size 0
  .amdhsa_kernarg_size 88
  .amdhsa_user_sgpr_count 2
  .amdhsa_user_sgpr_kernarg_segment_ptr 1
  .amdhsa_system_sgpr_workgroup_id_x 1
.end_amdhsa_kernel"""
    launch = f"; @launch kernel={name} grid=(256,1,1) block=(512,1,1) lds=163840"
    return launch, body, desc
```

```python
from attn import WS_KV, KV_HEAD, WS_Q, WS_O, WS_DBG, R
import struct

QSCALE = struct.unpack('<I', struct.pack('<f', 1.4426950408889634 / 20 ** 0.5))[0]
OPT = {}
ST = lambda: OPT.get('st', '')

class VM:
    def __init__(self): self.ops = []
    def issue(self, tag): self.ops.append(tag)
    def wait(self, tags):
        last = max(i for i, t in enumerate(self.ops) if t in tags)
        return len(self.ops) - 1 - last

def desc(name, vg, sg=80):
    return f""".p2align 6
.amdhsa_kernel {name}
  .amdhsa_next_free_vgpr {vg}
  .amdhsa_next_free_sgpr {sg}
  .amdhsa_accum_offset {vg}
  .amdhsa_group_segment_fixed_size 0
  .amdhsa_kernarg_size 88
  .amdhsa_user_sgpr_count 2
  .amdhsa_user_sgpr_kernarg_segment_ptr 1
  .amdhsa_system_sgpr_workgroup_id_x 1
.end_amdhsa_kernel"""

def finish(L):
    def keep(x):
        if OPT.get('no_x') and x.startswith('buffer_load_dwordx4 v['): return False
        if OPT.get('no_w') and x.endswith(' lds'): return False
        if OPT.get('no_mfma') and x.startswith('v_mfma'): return False
        if OPT.get('no_tr') and x.startswith('ds_read'): return False
        if OPT.get('no_st') and x.startswith('buffer_store') and 'v[4:7]' not in x: return False
        return True
    return "\n".join(x for x in L if keep(x))

def stamp_code(e, slot, waves, sWS, wsg):
    e("s_memtime s[70:71]")
    e("s_memrealtime s[72:73]")
    e("s_waitcnt lgkmcnt(0)")
    e("s_sub_u32 s70, s70, s66")
    e("s_sub_u32 s72, s72, s68")
    e("v_mov_b32 v4, s70")
    e("v_mov_b32 v5, s72")
    e("s_sub_u32 s74, s74, s66")
    e("s_sub_u32 s76, s76, s66")
    e("s_lshl_b32 s76, s76, 16")
    e("s_or_b32 s74, s74, s76")
    e("v_mov_b32 v6, s74")
    e("v_mov_b32 v7, s68")
    e(f"s_mul_i32 s75, s2, {waves}")
    e(f"s_add_u32 s75, s75, {wsg}")
    e("s_lshl_b32 s75, s75, 4")
    e(f"s_add_u32 s75, s75, {WS_DBG + slot*0x40000}")
    e("v_mov_b32 v8, 0")
    e(f"buffer_store_dwordx4 v[4:7], v8, {sWS}, s75 offen")

def mfma(d, w, x, k, first):
    c = "0" if first else R(d, 4)
    if k == 'T': return f"v_mfma_f32_16x16x32_bf16 {R(d,4)}, {R(w,4)}, {R(x,4)}, {c}"
    return f"v_mfma_f32_16x16x32_bf16 {R(d,4)}, {R(x,4)}, {R(w,4)}, {c}"

def interleave(e, ms, rd, per=1, ev=()):
    rd = list(rd); ev = list(ev)
    for m in ms:
        e(m)
        if rd:
            for _ in range(per):
                if rd: e(rd.pop(0))
        elif ev:
            ev.pop(0)()
    for x in rd: e(x)
    for f in ev: f()

SLOT = 40960; XO = 0; WO = 16384; KO = 36864

def proj_kernel(name="proj_kernel", stamp=False):
    L = []; e = L.append
    ACC = 24
    EACC = 104
    FR = 112
    def acc(j, i): return ACC + (j*5+i)*4
    def xf(buf, j): return FR + buf*48 + j*4
    def wf(buf, i): return FR + buf*48 + 16 + i*4
    def exf(buf): return FR + buf*48 + 36
    def ewf(buf, i): return FR + buf*48 + 40 + i*4
    NV = FR + 96
    vXA = [[5, 6], [7, 8]]
    vWA = [9, 10]
    vEX = [[11, 12], [13, 14]]
    vEW = [15, 16]
    T0, T1, T2, T3 = 17, 18, 19, 20
    e(f".globl {name}\n.p2align 8\n.type {name},@function\n{name}:")
    e("s_cmp_ge_u32 s2, 256")
    e(f"s_cbranch_scc1 {name}_end")
    e("s_load_dwordx16 s[16:31], s[0:1], 0")
    e("s_load_dwordx2 s[4:5], s[0:1], 80")
    if stamp: e("s_memtime s[66:67]\ns_memrealtime s[68:69]")
    e("v_lshrrev_b32 v4, 6, v0")
    e("s_and_b32 s6, s2, 7")
    e("v_readfirstlane_b32 s11, v4")
    e("s_lshr_b32 s7, s2, 3")
    e("s_lshr_b32 s8, s6, 1")
    e("s_and_b32 s9, s6, 1")
    e("s_lshl_b32 s9, s9, 3")
    e("s_lshr_b32 s10, s7, 2")
    e("s_add_u32 s9, s9, s10")
    e("s_and_b32 s10, s7, 3")
    e("v_and_b32 v1, 63, v0")
    e("s_cmp_lt_u32 s11, 4")
    e(f"s_cbranch_scc1 {name}_compute")
    vXD = [5, 6, 7, 8]; vWD = [9, 10, 11, 12, 13]; vKD = 14
    e("s_sub_u32 s11, s11, 4")
    e("v_and_b32 v0, 255, v0")
    e("v_lshrrev_b32 v2, 3, v1")
    e("v_mul_u32_u24 v2, 1280, v2")
    e("v_lshrrev_b32 v3, 4, v1")
    e("v_xor_b32 v3, v3, v1")
    e("v_and_b32 v3, 7, v3")
    e(f"v_lshl_add_u32 v{vXD[0]}, v3, 4, v2")
    e("s_lshl_b32 s56, s9, 2")
    e("s_add_u32 s56, s56, s11")
    e("s_mul_i32 s56, s56, 40960")
    e("s_lshl_b32 s61, s11, 12")
    e("s_lshl_b32 s64, s10, 2")
    e("s_lshr_b32 s64, 0x8530, s64")
    e("s_and_b32 s64, s64, 15")
    e("s_lshr_b32 s65, s7, 2")
    e("s_add_u32 s64, s64, s65")
    e("s_sub_u32 s65, s64, 10")
    e("s_cmp_ge_u32 s64, 10")
    e("s_cselect_b32 s64, s65, s64")
    if OPT.get('norot'): e("s_mov_b32 s64, 0")
    e("s_mov_b32 s65, s64")
    e("s_mov_b32 s35, 0x00020000")
    e("s_mov_b32 s34, 2621440")
    e(f"v_xor_b32 v{vXD[1]}, 64, v{vXD[0]}")
    e(f"v_add_u32 v{vXD[1]}, 20480, v{vXD[1]}")
    e(f"v_add_u32 v{vXD[2]}, 10240, v{vXD[0]}")
    e(f"v_add_u32 v{vXD[3]}, 10240, v{vXD[1]}")
    e("s_cmp_eq_u32 s8, 3")
    e("s_cselect_b32 s58, 1, 3")
    e("s_mul_i32 s58, s58, 1280")
    e("s_cselect_b32 s59, 0, s8")
    e("s_cselect_b32 s42, 25600, 0")
    e("s_waitcnt lgkmcnt(0)")
    e("s_cselect_b32 s32, s22, s16")
    e("s_cselect_b32 s33, s23, s17")
    e("s_cselect_b32 s36, s24, s18")
    e("s_cselect_b32 s37, s25, s19")
    e("s_and_b32 s33, s33, 0xffff")
    vm = VM()
    def xload(c):
        if c:
            e("s_add_u32 s64, s64, 1")
            e("s_cmp_eq_u32 s64, 10")
            e("s_cselect_b32 s64, 0, s64")
        e("s_lshl_b32 s57, s64, 7")
        e("s_add_u32 s57, s57, s56")
        for j in range(4):
            e(f"s_add_u32 m0, s61, {(c%4)*SLOT + XO + j*1024}")
            e("s_nop 0")
            e(f"buffer_load_dwordx4 v{vXD[j]}, s[32:35], s57 offen lds")
            vm.issue(f"x{c}")
    def waddr(j):
        U = "v0"
        if j: e(f"v_add_u32 v{T3}, {j*256}, v0"); U = f"v{T3}"
        e(f"v_mul_u32_u24 v{T0}, 52429, {U}")
        e(f"v_lshrrev_b32 v{T0}, 19, v{T0}")
        e(f"v_mul_u32_u24 v{T2}, 10, v{T0}")
        e(f"v_sub_u32 v{T2}, {U}, v{T2}")
        e(f"v_lshrrev_b32 v{T1}, 1, v{T0}")
        e(f"v_xor_b32 v{T1}, v{T1}, v{T0}")
        e(f"v_bfe_u32 v{T1}, v{T1}, 2, 1")
        e(f"v_mul_u32_u24 v{T1}, 12, v{T1}")
        e(f"v_xor_b32 v{T1}, v{T1}, v{T0}")
        e(f"v_and_b32 v{T1}, 63, v{T1}")
        e(f"v_mul_u32_u24 v{T1}, s58, v{T1}")
        e(f"v_lshrrev_b32 v{T0}, 6, v{T0}")
        e(f"v_mul_u32_u24 v{T0}, 160, v{T0}")
        e(f"v_lshl_add_u32 v{T1}, v{T2}, 4, v{T1}")
        e(f"v_add_u32 v{vWD[j]}, v{T0}, v{T1}")
    def wload(c):
        if c:
            e("s_add_u32 s65, s65, 1")
            e("s_cmp_eq_u32 s65, 10")
            e("s_cselect_b32 s65, 0, s65")
        e("s_mul_i32 s55, s65, s60")
        e("s_add_u32 s55, s55, s59")
        for j in range(5):
            if c == 0: waddr(j)
            e(f"s_add_u32 m0, s62, {(c%4)*SLOT + WO + j*4096}")
            e("s_nop 0")
            e(f"buffer_load_dwordx4 v{vWD[j]}, s[36:39], s55 offen lds")
            vm.issue(f"w{c}")
        e(f"s_add_u32 m0, s62, {(c%4)*SLOT + KO}")
        e("s_mul_i32 s63, s65, 2560")
        e(f"buffer_load_dwordx4 v{vKD}, s[40:43], s63 offen lds")
        vm.issue(f"w{c}")
    xload(0)
    e("s_and_b32 s37, s37, 0xffff")
    e("s_mul_i32 s38, s58, 640")
    e("s_mov_b32 s39, 0x00020000")
    e("s_mov_b32 s43, 0x00020000")
    e("s_mul_i32 s59, s59, 1280")
    e("s_mul_i32 s60, s10, 320")
    e("s_add_u32 s59, s59, s60")
    e("s_lshl_b32 s60, s58, 6")
    e("s_lshl_b32 s62, s11, 10")
    e("s_bitcmp1_b32 s10, 0")
    e("s_cselect_b32 s40, s28, s26")
    e("s_cselect_b32 s41, s29, s27")
    e("s_and_b32 s41, s41, 0xffff")
    e(f"v_lshlrev_b32 v{vKD}, 4, v0")
    wload(0)
    order = OPT.get('order', "x1 x2 B w1 x3 w2 B w3")
    c = 0
    for tok in order.split():
        if tok == 'B':
            e(f"s_waitcnt vmcnt({vm.wait({f'x{c}', f'w{c}'})})")
            e("s_barrier"); c += 1
        elif tok[0] == 'x': xload(int(tok[1:]))
        else: wload(int(tok[1:]))
    nxt = 4
    while True:
        while nxt < 10 and nxt <= c + 2:
            xload(nxt); wload(nxt); nxt += 1
        if c == 10: break
        e(f"s_waitcnt vmcnt({vm.wait({f'x{c}', f'w{c}'})})")
        e("s_barrier"); c += 1
    e("s_endpgm")
    e(f"{name}_compute:")
    e("v_and_b32 v2, 15, v0")
    e("v_lshrrev_b32 v3, 4, v1")
    e("s_and_b32 s12, s11, 1")
    e("s_lshr_b32 s13, s11, 1")
    e(f"v_lshrrev_b32 v{T0}, 1, v2")
    e(f"v_xor_b32 v{T0}, v{T0}, v3")
    e(f"v_lshlrev_b32 v{T0}, 4, v{T0}")
    e(f"v_lshl_add_u32 v{T0}, v2, 7, v{T0}")
    e("s_lshl_b32 s14, s12, 13")
    e(f"v_add_u32 v{vXA[0][0]}, s14, v{T0}")
    e(f"v_xor_b32 v{vXA[0][1]}, 64, v{vXA[0][0]}")
    e(f"v_lshrrev_b32 v{T0}, 1, v3")
    e(f"v_lshlrev_b32 v{T0}, 4, v{T0}")
    e(f"v_and_b32 v{T1}, 1, v3")
    e(f"v_lshl_add_u32 v{T0}, v{T1}, 2, v{T0}")
    e(f"v_bfe_u32 v{T2}, v1, 2, 2")
    e(f"v_add_u32 v{T0}, v{T0}, v{T2}")
    e(f"v_mul_u32_u24 v{T0}, 160, v{T0}")
    e(f"v_and_b32 v{T1}, 3, v1")
    e(f"v_mul_u32_u24 v{T3}, 40, v{T1}")
    e("s_mul_i32 s14, s13, 10240")
    e(f"v_add3_u32 v{vWA[0]}, v{T0}, v{T3}, s14")
    e("s_and_b32 s15, s10, 2")
    e("s_add_u32 s15, s15, s13")
    e("s_lshl_b32 s14, s15, 11")
    e(f"v_add_u32 v{vEX[0][0]}, s14, v{vXA[0][0]}")
    e(f"v_add_u32 v{vEX[0][1]}, s14, v{vXA[0][1]}")
    e(f"v_lshl_add_u32 v{T0}, v3, 3, v{T2}")
    e(f"v_mul_u32_u24 v{T0}, 40, v{T0}")
    e(f"v_lshl_add_u32 v{vEW[0]}, v{T1}, 3, v{T0}")
    for a, b in ((vXA[1][0], vXA[0][0]), (vXA[1][1], vXA[0][1]), (vWA[1], vWA[0]), (vEX[1][0], vEX[0][0]), (vEX[1][1], vEX[0][1]), (vEW[1], vEW[0])):
        e(f"v_add_u32 v{a}, {2*SLOT}, v{b}")
    e("v_and_b32 v4, 8, v2")
    e("v_add_u32 v4, v4, v2")
    e("s_lshl_b32 s56, s9, 2")
    e("s_lshl_b32 s57, s12, 1")
    e("s_add_u32 s56, s56, s57")
    e("s_lshl_b32 s58, s10, 3")
    e("s_lshl_b32 s57, s13, 2")
    e("s_add_u32 s58, s58, s57")
    e("s_mov_b32 s46, 0x10000000")
    e("s_mov_b32 s47, 0x00020000")
    e("s_waitcnt lgkmcnt(0)")
    e("s_mov_b32 s44, s4")
    e("s_and_b32 s45, s5, 0xffff")
    e("s_cmp_eq_u32 s8, 2")
    e(f"s_cbranch_scc1 {name}_V")
    e("s_cmp_lt_u32 s8, 2")
    e(f"s_cbranch_scc1 {name}_QK0")
    e("s_bitcmp1_b32 s10, 0")
    e(f"s_cbranch_scc1 {name}_QK2")
    for var, kind, extra in (("QK1", 'T', 'T'), ("QK0", 'T', None), ("QK2", 'T', 'N'), ("V", 'N', None)):
        e(f"{name}_{var}:")
        def reads(s):
            c, sp = s >> 1, s & 1
            slot = c % 4; pr = slot >> 1; so = (slot & 1) * SLOT
            buf = s & 1
            out = []
            xr = [f"ds_read_b128 {R(xf(buf,j),4)}, v{vXA[pr][sp]} offset:{so + XO + j*2048}" for j in range(4)]
            wr = [f"ds_read_b64_tr_b16 {R(wf(buf,i)+2*j,2)}, v{vWA[pr]} offset:{so + WO + sp*5120 + j*1280 + 8*i}" for i in range(5) for j in range(2)]
            out = wr[:2] + xr + wr[2:]
            return out
        def ereads(s):
            c, sp = s >> 1, s & 1
            slot = c % 4; pr = slot >> 1; so = (slot & 1) * SLOT
            buf = s & 1
            out = [f"ds_read_b128 {R(exf(buf),4)}, v{vEX[pr][sp]} offset:{so + XO}"]
            for i in range(2):
                for j in range(2):
                    out.append(f"ds_read_b64_tr_b16 {R(ewf(buf,i)+2*j,2)}, v{vEW[pr]} offset:{so + sp*1280 + j*160 + 32*i}")
            return out
        if extra:
            e(f"v_add_u32 v{vEW[0]}, {KO}, v{vEW[0]}")
            e(f"v_add_u32 v{vEW[1]}, {KO}, v{vEW[1]}")
        e("s_barrier")
        if stamp: e("s_memtime s[74:75]")
        for x in reads(0): e(x)
        if extra:
            e("s_waitcnt lgkmcnt(8)")
            for x in ereads(0): e(x)
        for s in range(20):
            e("s_waitcnt lgkmcnt(0)")
            if s % 2 == 1 and s < 19: e("s_barrier")
            buf = s & 1
            ms = [mfma(acc(j,i), wf(buf,i), xf(buf,j), kind, s == 0) for i in range(5) for j in range(4)]
            if extra:
                ms += [mfma(EACC+4*i, ewf(buf,i), exf(buf), extra, s == 0) for i in range(2)]
            rd = []
            if s < 19:
                rd = reads(s+1)
                if extra: rd = rd + ["s_waitcnt lgkmcnt(8)"] + ereads(s+1)
            interleave(e, ms, rd)
        if stamp: e("s_memtime s[76:77]")
        if kind == 'T':
            e("s_cmp_eq_u32 s8, 1")
            e("s_cselect_b32 s49, 2, 1")
            e("s_mul_i32 s49, s49, 1280")
            e("s_mul_i32 s48, s49, 64")
            e(f"s_cselect_b32 s50, {WS_KV}, {WS_Q}")
            e(f"s_cselect_b32 s52, 1.0, {QSCALE}")
            e("s_mov_b32 s53, s52")
            e("s_cmp_eq_u32 s8, 3")
            e("s_cselect_b32 s51, 32, 0")
            e("s_add_u32 s51, s51, s58")
            e("s_mul_i32 s51, s51, s48")
            e("s_add_u32 s50, s50, s51")
            e("s_mul_i32 s51, s56, s49")
            e("s_add_u32 s50, s50, s51")
            e(f"v_mul_lo_u32 v{T0}, v3, s48")
            e(f"v_lshl_add_u32 v{T1}, v4, 4, v{T0}")
            e(f"v_lshl_add_u32 v{T2}, v4, 3, v{T0}")
            for j in range(4):
                a0 = acc(j, 0); b = j & 1
                for r in range(0, 20, 2):
                    e(f"v_pk_mul_f32 {R(a0+r,2)}, {R(a0+r,2)}, s[52:53]")
                for r in range(10):
                    e(f"v_cvt_pk_bf16_f32 v{a0+r}, v{a0+2*r}, v{a0+2*r+1}")
                if j == 2: e("s_add_u32 s50, s50, s49")
                e(f"buffer_store_dwordx4 {R(a0,4)}, v{T1}, s[44:47], s50 offen offset:{128*b}{ST()}")
                e(f"buffer_store_dwordx4 {R(a0+4,4)}, v{T1}, s[44:47], s50 offen offset:{512+128*b}{ST()}")
                e(f"buffer_store_dwordx2 {R(a0+8,2)}, v{T2}, s[44:47], s50 offen offset:{1024+64*b}{ST()}")
            if extra:
                e("s_lshr_b32 s51, s15, 1")
                e("s_add_u32 s51, s51, s56")
                e("s_mul_i32 s50, s51, 2560")
                e(f"s_add_u32 s50, s50, {WS_KV + 32*KV_HEAD}")
                e("s_lshl_b32 s54, s13, 3")
                for r in range(4):
                    e(f"v_cvt_pk_bf16_f32 v{EACC+r}, v{EACC+2*r}, v{EACC+2*r+1}")
            if extra == 'T':
                e(f"v_add_u32 v{T3}, s54, v4")
                e(f"v_lshrrev_b32 v{T0}, 1, v3")
                e(f"v_lshlrev_b32 v{T0}, 9, v{T0}")
                e(f"v_lshl_add_u32 v{T0}, v{T3}, 4, v{T0}")
                e(f"v_and_b32 v{T1}, 1, v3")
                e(f"v_lshl_add_u32 v{T0}, v{T1}, 3, v{T0}")
                e(f"v_lshlrev_b32 v{T1}, 3, v{T3}")
                e(f"buffer_store_dwordx2 {R(EACC,2)}, v{T0}, s[44:47], s50 offen{ST()}")
                e("s_mov_b64 exec, 0xffff")
                e(f"buffer_store_dwordx2 {R(EACC+2,2)}, v{T1}, s[44:47], s50 offen offset:1024{ST()}")
                e("s_mov_b64 exec, -1")
            if extra == 'N':
                e(f"v_mul_u32_u24 v{T0}, 320, v3")
                e(f"v_add_u32 v{T0}, s54, v{T0}")
                e(f"v_lshl_add_u32 v{T0}, v2, 4, v{T0}")
                e(f"buffer_store_dwordx2 {R(EACC,2)}, v{T0}, s[44:47], s50 offen offset:1280{ST()}")
                e("s_mov_b32 s54, 0x000f000f")
                e("s_mov_b32 s55, 0x000f000f")
                e("s_mov_b64 exec, s[54:55]")
                e(f"buffer_store_dwordx2 {R(EACC+2,2)}, v{T0}, s[44:47], s50 offen offset:{1280+256}{ST()}")
                e("s_mov_b64 exec, -1")
        else:
            e(f"s_mul_i32 s50, s58, {KV_HEAD}")
            e("s_mul_i32 s51, s56, 2560")
            e("s_add_u32 s50, s50, s51")
            e(f"s_mov_b32 s48, {KV_HEAD}")
            e(f"v_lshrrev_b32 v{T0}, 2, v2")
            e(f"v_mul_lo_u32 v{T0}, v{T0}, s48")
            e(f"v_mul_u32_u24 v{T1}, 320, v3")
            e(f"v_add_u32 v{T0}, v{T0}, v{T1}")
            e(f"v_and_b32 v{T1}, 3, v2")
            e(f"v_lshl_add_u32 v{T0}, v{T1}, 4, v{T0}")
            for tt in range(2):
                if tt: e("s_add_u32 s50, s50, 2560")
                for i in range(5):
                    d = FR + (tt*5+i)*4
                    for b in range(2):
                        for r in range(2):
                            e(f"v_cvt_pk_bf16_f32 v{d+2*b+r}, v{acc(2*tt+b,i)+2*r}, v{acc(2*tt+b,i)+2*r+1}")
                    e(f"buffer_store_dwordx4 {R(d,4)}, v{T0}, s[44:47], s50 offen offset:{1280 + 64*i}{ST()}")
        if stamp:
            e("s_waitcnt vmcnt(0)")
            stamp_code(e, 1, 4, "s[44:47]", "s11")
        e("s_endpgm")
    e(f"{name}_end:")
    e("s_endpgm")
    launch = f"; @launch kernel={name} grid=(256,1,1) block=(512,1,1) lds={4*SLOT}"
    return launch, finish(L), desc(name, NV)

def outp_kernel(name="outp_kernel", XW=10, stamp=False):
    L = []; e = L.append
    ACC = 16; WF = 56; XF = 96
    def acc(b, i): return ACC + (b*5+i)*4
    def wf(buf, i): return WF + buf*20 + i*4
    def xf(s, b): return XF + (s % XW)*8 + b*4
    NV = XF + XW*8
    vX = [5, 6]; vWA = [7, 8]; vWB = [9, 10]
    T0, T1, T2, T3 = 11, 12, 13, 14
    STG = 102400
    e(f".globl {name}\n.p2align 8\n.type {name},@function\n{name}:")
    e("s_cmp_ge_u32 s2, 256")
    e(f"s_cbranch_scc1 {name}_end")
    e("s_load_dwordx2 s[16:17], s[0:1], 16")
    e("s_load_dwordx4 s[20:23], s[0:1], 56")
    e("s_load_dwordx2 s[4:5], s[0:1], 80")
    if stamp: e("s_memtime s[66:67]\ns_memrealtime s[68:69]")
    e("v_lshrrev_b32 v4, 6, v0")
    e("s_and_b32 s6, s2, 7")
    e("v_readfirstlane_b32 s11, v4")
    e("s_lshr_b32 s7, s2, 3")
    e("s_lshr_b32 s8, s6, 2")
    e("s_and_b32 s10, s7, 7")
    e("s_and_b32 s13, s7, 3")
    if OPT.get('norot'): e("s_mov_b32 s13, 0")
    e("s_cmp_lt_u32 s11, 4")
    e(f"s_cbranch_scc1 {name}_compute")
    vWD = [5, 6, 7, 8, 9]
    e("v_and_b32 v1, 63, v0")
    e("s_sub_u32 s11, s11, 4")
    e("s_mul_i32 s59, s10, 160")
    e("s_mul_i32 s61, s11, 5120")
    e("s_mul_i32 s64, s13, 5")
    e("s_add_u32 s64, s64, s11")
    e("s_mov_b32 s39, 0x00020000")
    e("s_mov_b32 s38, 819200")
    def waddr(r):
        U = "v1"
        if r: e(f"v_add_u32 v{T3}, {r*64}, v1"); U = f"v{T3}"
        e(f"v_mul_u32_u24 v{T0}, 52429, {U}")
        e(f"v_lshrrev_b32 v{T0}, 19, v{T0}")
        e(f"v_mul_u32_u24 v{T0}, 1120, v{T0}")
        e(f"v_lshl_add_u32 v{vWD[r]}, {U}, 4, v{T0}")
    waddr(0)
    e("s_cmp_eq_u32 s8, 0")
    e("s_waitcnt lgkmcnt(0)")
    e("s_cselect_b32 s36, s16, s20")
    e("s_cselect_b32 s37, s17, s21")
    e("s_and_b32 s37, s37, 0xffff")
    def wl(it):
        if it:
            e("s_add_u32 s64, s64, 4")
            e("s_sub_u32 s65, s64, 20")
            e("s_cmp_ge_u32 s64, 20")
            e("s_cselect_b32 s64, s65, s64")
        e("s_mul_i32 s55, s64, 40960")
        e("s_add_u32 s55, s55, s59")
        for j in range(5):
            if it == 0 and j: waddr(j)
            e(f"s_add_u32 m0, s61, {it*20480 + j*1024}")
            e("s_nop 0")
            e(f"buffer_load_dwordx4 v{vWD[j]}, s[36:39], s55 offen lds")
    n = 0
    for it in range(5):
        while n < 5 and n <= it + OPT.get('wahead', 1):
            wl(n); n += 1
        e(f"s_waitcnt vmcnt({5*(n-1-it)})")
        e("s_barrier")
    e("s_endpgm")
    e(f"{name}_compute:")
    e("s_and_b32 s9, s6, 3")
    e("s_lshl_b32 s9, s9, 2")
    e("s_lshr_b32 s12, s7, 3")
    e("s_add_u32 s9, s9, s12")
    e("v_and_b32 v1, 63, v0")
    e(f"v_lshlrev_b32 v{vX[0]}, 4, v1")
    e(f"v_add_u32 v{vX[1]}, 20480, v{vX[0]}")
    e("s_lshl_b32 s56, s9, 2")
    e("s_add_u32 s56, s56, s11")
    e("s_lshl_b32 s57, s8, 6")
    e("s_add_u32 s57, s57, s56")
    e("s_mul_i32 s57, s57, 40960")
    e(f"s_add_u32 s57, s57, {WS_O}")
    e("s_mov_b32 s35, 0x00020000")
    e("s_mov_b32 s34, 0x10000000")
    e("s_waitcnt lgkmcnt(0)")
    e("s_mov_b32 s32, s4")
    e("s_and_b32 s33, s5, 0xffff")
    vm = VM()
    def xload(s):
        G, m = divmod(s, 5)
        if m == 0:
            if G:
                e("s_add_u32 s13, s13, 1")
                e("s_and_b32 s13, s13, 3")
            e("s_mul_i32 s58, s13, 5120")
            e("s_add_u32 s58, s58, s57")
        if m == 4: e("s_add_u32 s58, s58, 4096")
        for b in range(2):
            e(f"buffer_load_dwordx4 {R(xf(s,b), 4)}, v{vX[b]}, s[32:35], s58 offen offset:{(m%4)*1024}")
            vm.issue(f"x{s}")
    XP = OPT.get('xp', 4)
    for s in range(XP): xload(s)
    e("s_mov_b32 s44, s22")
    e("s_and_b32 s45, s23, 0xffff")
    e("s_mov_b32 s47, 0x00020000")
    e("s_mov_b32 s46, 5242880")
    e("v_and_b32 v2, 15, v0")
    e("v_lshrrev_b32 v3, 4, v1")
    e(f"v_bfe_u32 v{T0}, v1, 2, 2")
    e(f"v_mul_u32_u24 v{T0}, 160, v{T0}")
    e(f"v_and_b32 v{T1}, 3, v1")
    e(f"v_mul_u32_u24 v{T1}, 40, v{T1}")
    e(f"v_add_u32 v{T0}, v{T0}, v{T1}")
    e(f"v_lshrrev_b32 v{T1}, 1, v3")
    e(f"v_and_b32 v{T2}, 1, v3")
    e(f"v_mul_u32_u24 v{T3}, 3200, v{T1}")
    e(f"v_add_u32 v{vWA[0]}, v{T0}, v{T3}")
    e(f"v_mul_u32_u24 v{T3}, 640, v{T2}")
    e(f"v_add_u32 v{vWA[0]}, v{vWA[0]}, v{T3}")
    e(f"v_mul_u32_u24 v{T3}, 12800, v{T1}")
    e(f"v_add_u32 v{vWB[0]}, v{T0}, v{T3}")
    e(f"v_mul_u32_u24 v{T3}, 3200, v{T2}")
    e(f"v_add_u32 v{vWB[0]}, v{vWB[0]}, v{T3}")
    e(f"v_add_u32 v{vWA[1]}, 51200, v{vWA[0]}")
    e(f"v_add_u32 v{vWB[1]}, 51200, v{vWB[0]}")
    def reads(s):
        G, m = divmod(s, 5); buf = s & 1; pr = G >> 1; g0 = (G & 1) * 160
        out = []
        for i in range(5):
            for j in range(2):
                if m < 4: out.append(f"ds_read_b64_tr_b16 {R(wf(buf,i)+2*j,2)}, v{vWA[pr]} offset:{(g0 + 40*m + 8*j)*160 + 8*i}")
                else: out.append(f"ds_read_b64_tr_b16 {R(wf(buf,i)+2*j,2)}, v{vWB[pr]} offset:{(g0 + 40*j + 16)*160 + 8*i}")
        return out
    e("s_barrier")
    if stamp: e("s_memtime s[74:75]")
    for x in reads(0): e(x)
    nx = XP
    for s in range(20):
        e(f"s_waitcnt vmcnt({vm.wait({f'x{s}'})}) lgkmcnt(0)")
        if s in (2, 6, 10, 14): e("s_barrier")
        buf = s & 1
        ms = [mfma(acc(b,i), wf(buf,i), xf(s,b), 'T', s == 0) for i in range(5) for b in range(2)]
        ev = []
        k = 0
        while nx < 20 and nx <= s + XW - 1 and k < 2:
            ev.append(lambda q=nx: xload(q)); nx += 1; k += 1
        interleave(e, ms, reads(s+1) if s < 19 else [], per=2, ev=ev)
    if stamp: e("s_memtime s[76:77]")
    e("s_mul_i32 s51, s11, 5120")
    e(f"s_add_u32 s51, s51, {STG}")
    e(f"v_mul_u32_u24 v{T0}, 160, v2")
    e(f"v_mul_u32_u24 v{T1}, 40, v3")
    e(f"v_add3_u32 v{T0}, v{T0}, v{T1}, s51")
    e(f"v_add_u32 v{T1}, s51, v{vX[0]}")
    e("s_mul_i32 s50, s56, 81920")
    e("s_mul_i32 s52, s8, 1280")
    e("s_add_u32 s50, s50, s52")
    e("s_mul_i32 s52, s10, 160")
    e("s_add_u32 s50, s50, s52")
    for b in range(2):
        for i in range(5):
            a = acc(b, i)
            e(f"v_cvt_pk_bf16_f32 v{a}, v{a}, v{a+1}")
            e(f"v_cvt_pk_bf16_f32 v{a+1}, v{a+2}, v{a+3}")
            e(f"ds_write_b64 v{T0}, {R(a,2)} offset:{b*2560 + 8*i}")
    for k in range(5):
        U = "v1"
        if k: e(f"v_add_u32 v{T3}, {k*64}, v1"); U = f"v{T3}"
        e(f"v_mul_u32_u24 v{T2}, 52429, {U}")
        e(f"v_lshrrev_b32 v{T2}, 19, v{T2}")
        e(f"v_mul_u32_u24 v{T2}, 2400, v{T2}")
        e(f"v_lshl_add_u32 v{XF+k}, {U}, 4, v{T2}")
    e("s_waitcnt lgkmcnt(0)")
    for k in range(5):
        e(f"ds_read_b128 {R(WF+4*k,4)}, v{T1} offset:{k*1024}")
    for k in range(5):
        e(f"s_waitcnt lgkmcnt({4-k})")
        e(f"buffer_store_dwordx4 {R(WF+4*k,4)}, v{XF+k}, s[44:47], s50 offen{ST()}")
    if stamp:
        e("s_waitcnt vmcnt(0)")
        stamp_code(e, 2, 4, "s[32:35]", "s11")
    e(f"{name}_end:")
    e("s_endpgm")
    launch = f"; @launch kernel={name} grid=(256,1,1) block=(512,1,1) lds={STG+20480}"
    return launch, finish(L), desc(name, NV)
```

```python
from build import build, check
from attn import attn_kernel
import gemm
from gemm import proj_kernel, outp_kernel, desc
P=proj_kernel(); A=attn_kernel(opts={'prio': 13}); O=outp_kernel()
build([P,A,O,P,A,O], 'e_x2.s')
build([P,P,A,O], 'e_p2.s')
build([P,A,A,O], 'e_a2.s')
def scr(k, name):
    l,b,d = k
    key=f"s_cbranch_scc1 {name}_end"
    b=b.replace(key, key+"\ns_lshr_b32 s3, s2, 5\ns_and_b32 s2, s2, 31\ns_lshl_b32 s2, s2, 3\ns_or_b32 s2, s2, s3",1)
    return l,b,d
build([scr(P,"proj_kernel"),scr(A,"attn_kernel"),scr(O,"outp_kernel")], 'e_scr.s')
check('e_scr.s')
```
